```python
import torch

def _softmax(x, axis=-1):
    return torch.softmax(x, dim=axis)

def _gelu(x):
    return torch.nn.functional.gelu(x, approximate='tanh')

def _silu(x):
    return torch.nn.functional.silu(x)

def _sigmoid(x):
    return torch.sigmoid(x)

def _layernorm(x, axis=-1, eps=1e-05):
    m = x.mean(dim=axis, keepdim=True)
    v = x.var(dim=axis, keepdim=True, unbiased=False)
    return (x - m) / torch.sqrt(v + eps)

def _scatter_add(tgt, idx, src, axis=0):
    return tgt.clone().index_add_(axis, idx, src)

def _segment_sum(src, seg, n):
    out = torch.zeros((n,) + src.shape[1:], dtype=src.dtype)
    return out.index_add_(0, seg, src)

def _pad(x, pw):
    flat = tuple((v for pair in reversed(pw) for v in pair))
    return torch.nn.functional.pad(x, flat)
kernel_name = 'adaLN_cond__ssm_conv_s4__mixer_gmlp__prompt'

def setup_inputs():

    _w = lambda a: (lambda t: t.to(torch.bfloat16) if t.is_floating_point() else t)(torch.as_tensor(a))

    def _A_setup():
        B, L, D, N = (1, 2048, 576, 128)
        A_re = -(lambda _x: torch.exp(torch.as_tensor(_x)))((lambda *s: torch.randn(*s, dtype=torch.bfloat16) * 3.2)(D, N))
        A_im = torch.pi * (lambda *s: torch.randn(*s, dtype=torch.bfloat16) * 0.1)(D, N)
        B_re = (lambda *s: torch.randn(*s, dtype=torch.bfloat16) * 0.2)(D, N)
        B_im = (lambda *s: torch.randn(*s, dtype=torch.bfloat16) * 0.2)(D, N)
        C_re = (lambda *s: torch.randn(*s, dtype=torch.bfloat16) * 0.2)(D, N)
        C_im = (lambda *s: torch.randn(*s, dtype=torch.bfloat16) * 0.2)(D, N)
        log_dt = (lambda *s: torch.randn(*s, dtype=torch.bfloat16) * 0.1)(D) * 0.5 - 4.0
        Dskip = (lambda *s: torch.randn(*s, dtype=torch.bfloat16) * 0.2)(D)
        return {'u': _w((lambda *s: torch.randn(*s, dtype=torch.bfloat16) * 0.05)(B, L, D)), 'A_re': _w(A_re), 'A_im': _w(A_im), 'B_re': _w(B_re), 'B_im': _w(B_im), 'C_re': _w(C_re), 'C_im': _w(C_im), 'log_dt': _w(log_dt), 'Dskip': _w(Dskip)}
    _A_in = _A_setup()

    def _B_setup():
        B, S, D, F = (1, 2048, 576, 4608)
        Fh = F // 2
        return {'x': _w((lambda *s: torch.randn(*s, dtype=torch.bfloat16) * 0.05)(B, S, D)), 'w_in': _w((lambda *s: torch.randn(*s, dtype=torch.bfloat16) * 0.2)(D, 2 * Fh)), 'w_sp': _w(0.01 * (lambda *s: torch.randn(*s, dtype=torch.bfloat16) * 0.2)(S, S)), 'b_sp': _w(1.0 + 0.01 * (lambda *s: torch.randn(*s, dtype=torch.bfloat16) * 0.05)(S)), 'w_out': _w((lambda *s: torch.randn(*s, dtype=torch.bfloat16) * 0.05)(Fh, D))}
    _B_in = _B_setup()
    return {'A_u': _A_in['u'], 'A_A_re': _A_in['A_re'], 'A_A_im': _A_in['A_im'], 'A_B_re': _A_in['B_re'], 'A_B_im': _A_in['B_im'], 'A_C_re': _A_in['C_re'], 'A_C_im': _A_in['C_im'], 'A_log_dt': _A_in['log_dt'], 'A_Dskip': _A_in['Dskip'], 'B_x': _B_in['x'], 'B_w_in': _B_in['w_in'], 'B_w_sp': _B_in['w_sp'], 'B_b_sp': _B_in['b_sp'], 'B_w_out': _B_in['w_out'], 'c': _w((lambda *s: torch.randn(*s, dtype=torch.bfloat16) * 0.1)(1, 576) * 8.0), 'w_mod': _w((lambda *s: torch.randn(*s, dtype=torch.bfloat16) * 0.1)(576, 6 * 576) * 576 ** (-0.5) * 8.0)}

def reference(A_u, A_A_re, A_A_im, A_B_re, A_B_im, A_C_re, A_C_im, A_log_dt, A_Dskip, B_x, B_w_in, B_w_sp, B_b_sp, B_w_out, c, w_mod):

    def _A_ref(u, A_re, A_im, B_re, B_im, C_re, C_im, log_dt, Dskip):
        Bsz, L, D = u.shape
        dt = torch.exp(log_dt)[:, None]
        A = A_re + 1j * A_im
        Bc = B_re + 1j * B_im
        Cc = C_re + 1j * C_im
        logdA = dt * A
        dB = dt * Bc
        l = (lambda x, dt: x.to(dt))(torch.arange(L), A_re.dtype)
        P = torch.exp(logdA[:, :, None] * l[None, None, :])
        K = torch.einsum('dn,dnl,dn->dl', Cc, P, dB).real
        L2 = 2 * L
        Kp = _pad(K, ((0, 0), (0, L)))
        up = (lambda x, *d: x.permute(*d))(u, 0, 2, 1)
        up = _pad(up, ((0, 0), (0, 0), (0, L)))
        Kf = (lambda x, axes=(-2, -1): torch.fft.rfft2(x.float(), dim=axes))(Kp[:, None, :], axes=(-2, -1))
        Uf = (lambda x, axes=(-2, -1): torch.fft.rfft2(x.float(), dim=axes))(up[:, :, None, :], axes=(-2, -1))
        Yf = Uf * Kf[None, :, :, :]
        y = (lambda x, s, axes=(-2, -1): torch.fft.irfft2(x, s=s, dim=axes).to(torch.bfloat16))(Yf, (1, L2), axes=(-2, -1))[:, :, 0, :L]
        y = (lambda x, *d: x.permute(*d))(y, 0, 2, 1) + u * Dskip[None, None, :]
        return y

    def _B_ref(x, w_in, w_sp, b_sp, w_out):
        B, S, D = x.shape
        F = w_in.shape[-1]
        Fh = F // 2
        z = _gelu(torch.einsum('bsd,df->bsf', x, w_in))
        z1 = z[..., :Fh].clone()
        z2 = _layernorm(z[..., Fh:], axis=-1)
        g = torch.einsum('ts,bsf->btf', w_sp, z2) + b_sp[None, :, None]
        return torch.einsum('bsf,fd->bsd', z1 * g, w_out)
    x = A_u
    mod = (_silu(c) @ w_mod).reshape(c.shape[0], 6, 1, -1)
    sa, ca, ga, sb, cb, gb = (mod[:, 0].clone(), mod[:, 1].clone(), mod[:, 2].clone(), mod[:, 3].clone(), mod[:, 4].clone(), mod[:, 5].clone())
    h = _layernorm(x, axis=-1) * (1 + ca) + sa
    x = x + ga * _A_ref(h, A_A_re, A_A_im, A_B_re, A_B_im, A_C_re, A_C_im, A_log_dt, A_Dskip)
    h = _layernorm(x, axis=-1) * (1 + cb) + sb
    x = x + gb * _B_ref(h, B_w_in, B_w_sp, B_b_sp, B_w_out)
    return x
```

```python
class A:
    def __init__(self): self.l = []
    def __call__(self, s):
        for x in s.strip('\n').split('\n'): self.l.append('    ' + x.strip())
    def label(self, n): self.l.append(n + ':')
    def c(self, s): self.l.append('    ; ' + s)
    def raw(self, s): self.l.append(s)
    def text(self): return '\n'.join(self.l) + '\n'

def kernel_head(name):
    return f""".globl {name}
.p2align 8
.type {name},@function
{name}:
"""
def kernel_desc(name, vgpr, sgpr=96, accum=None, ky=False):
    if accum is None: accum = (vgpr + 3) // 4 * 4
    return f""".amdhsa_kernel {name}
  .amdhsa_next_free_vgpr {vgpr}
  .amdhsa_next_free_sgpr {sgpr}
  .amdhsa_accum_offset {accum}
  .amdhsa_group_segment_fixed_size 0
  .amdhsa_kernarg_size 152
  .amdhsa_user_sgpr_count 2
  .amdhsa_user_sgpr_kernarg_segment_ptr 1
  .amdhsa_system_sgpr_workgroup_id_x 1
  .amdhsa_float_denorm_mode_32 3
.end_amdhsa_kernel
"""
def wrap(launches, kernels):
    s = ''
    for (n, g, b, lds) in launches:
        s += f"; @launch kernel={n} grid=({g[0]},{g[1]},{g[2]}) block=({b[0]},{b[1]},{b[2]}) lds={lds}\n"
    s += '.amdgcn_target "amdgcn-amd-amdhsa--gfx950"\n.text\n'
    for (n, body, v, sg, ac) in kernels:
        s += kernel_head(n) + body + '\n'
    s += '.section .rodata,"a"\n'
    for (n, body, v, sg, ac) in kernels:
        s += '.p2align 6\n' + kernel_desc(n, v, sg, ac)
    return s
```

```python
KA = dict(u=0, are=8, aim=16, bre=24, bim=32, cre=40, cim=48, logdt=56, dskip=64, bx=72, win=80, wsp=88, bsp=96, wout=104, c=112, wmod=120, out=128, dbg=136, ws=144)
WS = dict(MOD=0x000000, ST1=0x010000, XT=0x100000, KR=0x400000, X1T=0x900000, WOF=0xC00000, WPF=0x1000000,
          WCS=0x1600000, ST3=0x1700000, Z1F=0x1800000, Z2F=0x2200000, PF=0x2C00000)
L, D, F, FH = 2048, 576, 4608, 2304

class LgkmSched:
    def __init__(self, a): self.a = a; self.q = []
    def issue(self, regs): self.q.append(set(regs)); assert len(self.q) <= 15, "lgkmcnt overflow"
    def need(self, regs, slack=0):
        regs = set(regs)
        idx = -1
        for i, r in enumerate(self.q):
            if r & regs: idx = i
        if idx < 0: return
        idx = min(len(self.q) - 1, idx + slack)
        n = len(self.q) - 1 - idx
        self.a(f"s_waitcnt lgkmcnt({n})")
        self.q = self.q[idx + 1:]
    def drain(self, force=False):
        if self.q or force: self.a("s_waitcnt lgkmcnt(0)")
        self.q = []

def srd(a, s, base_lo, base_hi, size):
    a(f"s_mov_b32 s{s}, s{base_lo}\n s_and_b32 s{s+1}, s{base_hi}, 0xffff\n s_mov_b32 s{s+2}, {size}\n s_mov_b32 s{s+3}, 0x20000")
def add64(a, lo, hi, imm_or_sreg):
    a(f"s_add_u32 s{lo}, s{lo}, {imm_or_sreg}\n s_addc_u32 s{hi}, s{hi}, 0")


NMARK = 6
def stamp_begin(a):
    a(f"s_load_dwordx2 s[80:81], s[0:1], {KA['dbg']}\n s_memrealtime s[82:83]\n s_memtime s[84:85]")
    for k in range(NMARK): a(f"s_mov_b64 s[{66+2*k}:{67+2*k}], 0") if False else None
def mark(a, k, stamp=True):
    if stamp: a(f"s_memtime s[{66+2*k}:{67+2*k}]\n s_waitcnt lgkmcnt(0)")
STAMP_TID = 0
def emit_stamp(a, name, tidreg=255):
    a(f"""s_waitcnt vmcnt(0) lgkmcnt(0)
    s_memtime s[86:87]
    s_memrealtime s[88:89]
    s_waitcnt lgkmcnt(0)
    s_sub_u32 s86, s86, s84
    v_cmp_eq_u32 vcc, {hex(STAMP_TID) if STAMP_TID > 64 else STAMP_TID}, v{tidreg}
    s_and_saveexec_b64 s[90:91], vcc
    s_cbranch_execz {name}_end
    v_mov_b32 v0, s86
    v_mov_b32 v1, s82
    v_mov_b32 v2, s88
    v_mov_b32 v3, 0
    s_lshl_b32 s3, s2, 6
    v_mov_b32 v12, s3
    global_store_dwordx4 v12, v[0:3], s[80:81]""")
    for k in range(NMARK):
        a(f"s_sub_u32 s{66+2*k}, s{66+2*k}, s84\n v_mov_b32 v{4+k}, s{66+2*k}")
    a("global_store_dwordx4 v12, v[4:7], s[80:81] offset:16\n global_store_dwordx2 v12, v[8:9], s[80:81] offset:32")
```

```python
from asmgen import *
from gen_common import *
from gen_k3 import fbits, pk
from gen_k2 import unpack, KRS
import math
LOG2E = 1.4426950408889634
NA, NB, ND, NC = 108, 128, 72, 576

def gen_k1(name="prep_kernel", stamp=False):
    a = A()
    oB, oD, oC = NA, NA+NB, NA+NB+ND
    tot = oC + NC
    a(f"""s_cmp_ge_u32 s2, {tot}
    s_cbranch_scc1 {name}_end
    s_load_dwordx2 s[6:7], s[0:1], {KA['ws']}""")
    if stamp: stamp_begin(a); a('v_mov_b32 v255, v0')
    a(f"""v_lshrrev_b32 v1, 6, v0
    v_and_b32 v2, 63, v0            ; lane
    s_nop 0
    v_readfirstlane_b32 s17, v1     ; wave
    s_cmp_ge_u32 s2, {oC}
    s_cbranch_scc1 {name}_C
    s_cmp_ge_u32 s2, {oD}
    s_cbranch_scc1 {name}_D
    s_cmp_ge_u32 s2, {oB}
    s_cbranch_scc1 {name}_B""")
    a(f"""s_load_dwordx2 s[8:9], s[0:1], {KA['wmod']}
    s_load_dwordx2 s[10:11], s[0:1], {KA['c']}
    v_lshrrev_b32 v3, 2, v0          ; rg
    v_and_b32 v4, 3, v0              ; cq
    v_mul_u32_u24 v5, 6912, v3
    v_lshlrev_b32 v6, 4, v4
    v_add_u32 v5, v5, v6
    v_lshlrev_b32 v6, 1, v3          ; rg*2
    s_lshl_b32 s20, s2, 6
    s_waitcnt lgkmcnt(0)""")
    srd(a, 28, 8, 9, 576*6912); srd(a, 32, 10, 11, 1152)
    Wd = 16; Cv = 52; AC = 64; T = 72
    for i in range(9):
        a(f"s_add_u32 s21, s20, {i*64*6912}\n buffer_load_dwordx4 v[{Wd+4*i}:{Wd+4*i+3}], v5, s[28:31], s21 offen")
    for i in range(9): a(f"buffer_load_ushort v{Cv+i}, v6, s[32:35], 0 offen offset:{i*128}")
    for e in range(8): a(f"v_mov_b32 v{AC+e}, 0")
    a("s_waitcnt vmcnt(0)")
    for i in range(9): a(f"v_lshlrev_b32 v{Cv+i}, 16, v{Cv+i}")
    for i in range(9): a(f"v_mul_f32 v{T+i}, {fbits(-LOG2E):#x}, v{Cv+i}")
    for i in range(9): a(f"v_exp_f32 v{T+i}, v{T+i}")
    for i in range(9): a(f"v_add_f32 v{T+i}, 1.0, v{T+i}")
    for i in range(9): a(f"v_rcp_f32 v{T+i}, v{T+i}")
    a("s_nop 0")
    for i in range(9): a(f"v_mul_f32 v{Cv+i}, v{Cv+i}, v{T+i}")
    for i in range(9): a(f"v_cvt_pk_bf16_f32 v{Cv+i}, v{Cv+i}, v{Cv+i}")
    for i in range(9): a(f"v_lshlrev_b32 v{Cv+i}, 16, v{Cv+i}")
    for i in range(9):
        for k in range(4): unpack(a, Wd+4*i+k, T+2*k, T+2*k+1)
        for e in range(8): a(f"v_fmac_f32 v{AC+e}, v{Cv+i}, v{T+e}")
    a("s_nop 1")
    for sh in (4, 8):
        for e in range(8): a(f"v_add_f32_dpp v{AC+e}, v{AC+e}, v{AC+e} row_ror:{sh} row_mask:0xf bank_mask:0xf")
    a(f"""v_and_b32 v3, 15, v2
    v_lshrrev_b32 v7, 4, v0          ; group 0..15
    v_lshlrev_b32 v7, 7, v7
    v_lshlrev_b32 v8, 5, v4
    v_add_u32 v7, v7, v8
    v_cmp_gt_u32 vcc, 4, v3
    s_and_saveexec_b64 s[44:45], vcc
    ds_write_b128 v7, v[{AC}:{AC+3}]
    ds_write_b128 v7, v[{AC+4}:{AC+7}] offset:16
    s_mov_b64 exec, s[44:45]
    s_waitcnt lgkmcnt(0)
    s_barrier
    v_cmp_gt_u32 vcc, 32, v0
    s_and_saveexec_b64 s[44:45], vcc
    s_cbranch_execz {name}_fin
    v_lshlrev_b32 v7, 2, v0""")
    for g in range(16): a(f"ds_read_b32 v{T+g}, v7 offset:{g*128}")
    a("s_waitcnt lgkmcnt(0)")
    for g in range(1, 16): a(f"v_add_f32 v{T}, v{T}, v{T+g}")
    a(f"v_cvt_pk_bf16_f32 v{T}, v{T}, v{T}\n v_lshlrev_b32 v{T}, 16, v{T}")
    a(f"s_add_u32 s26, s6, {WS['MOD']}\n s_addc_u32 s27, s7, 0"); srd(a, 28, 26, 27, 6*576*4)
    a(f"s_lshl_b32 s20, s2, 7\n buffer_store_dword v{T}, v7, s[28:31], s20 offen\n s_branch {name}_fin")
    a.label(f"{name}_B")
    RS = 1184
    a(f"""s_load_dwordx2 s[8:9], s[0:1], {KA['u']}
    s_sub_u32 s12, s2, {oB}
    v_lshrrev_b32 v3, 4, v0            ; row
    v_and_b32 v4, 15, v0               ; sub
    v_mul_u32_u24 v5, 1152, v3
    v_lshlrev_b32 v6, 4, v4
    v_add_u32 v5, v5, v6
    v_mul_u32_u24 v7, {RS}, v3
    v_add_u32 v7, v7, v6
    s_mul_i32 s20, s12, {16*1152}
    s_waitcnt lgkmcnt(0)""")
    srd(a, 28, 8, 9, 2048*1152)
    Xc = 16; T = 48
    for i in range(4): a(f"buffer_load_dwordx4 v[{Xc+4*i}:{Xc+4*i+3}], v5, s[28:31], s20 offen offset:{i*256}")
    for k in range(4): a(f"v_mov_b32 v{Xc+16+k}, 0")
    a("v_cmp_gt_u32 vcc, 8, v4\n s_and_saveexec_b64 s[44:45], vcc")
    a(f"buffer_load_dwordx4 v[{Xc+16}:{Xc+19}], v5, s[28:31], s20 offen offset:1024")
    a("s_mov_b64 exec, s[44:45]")
    a(f"v_mov_b32 v{T}, 0\n v_mov_b32 v{T+1}, 0\n s_waitcnt vmcnt(0)")
    for i in range(4): a(f"ds_write_b128 v7, v[{Xc+4*i}:{Xc+4*i+3}] offset:{i*256}")
    a("s_and_saveexec_b64 s[44:45], vcc")
    a(f"ds_write_b128 v7, v[{Xc+16}:{Xc+19}] offset:1024")
    a("s_mov_b64 exec, s[44:45]")
    for r in range(20):
        a(f"v_lshlrev_b32 v{T+2}, 16, v{Xc+r}\n v_and_b32 v{T+3}, 0xffff0000, v{Xc+r}")
        a(f"v_add_f32 v{T}, v{T}, v{T+2}\n v_fmac_f32 v{T+1}, v{T+2}, v{T+2}\n v_add_f32 v{T}, v{T}, v{T+3}\n v_fmac_f32 v{T+1}, v{T+3}, v{T+3}")
    for sh in (8, 4, 2, 1):
        a(f"s_nop 1\n v_add_f32_dpp v{T}, v{T}, v{T} row_ror:{sh} row_mask:0xf bank_mask:0xf\n v_add_f32_dpp v{T+1}, v{T+1}, v{T+1} row_ror:{sh} row_mask:0xf bank_mask:0xf")
    a(f"""v_mul_f32 v{T}, {fbits(1.0/576):#x}, v{T}
    v_mul_f32 v{T+1}, {fbits(1.0/576):#x}, v{T+1}
    v_fma_f32 v{T+1}, -v{T}, v{T}, v{T+1}
    v_max_f32 v{T+1}, 0, v{T+1}
    v_cvt_pk_bf16_f32 v{T}, v{T}, v{T}
    v_lshlrev_b32 v{T}, 16, v{T}             ; mb
    v_cvt_pk_bf16_f32 v{T+1}, v{T+1}, v{T+1}
    v_lshlrev_b32 v{T+1}, 16, v{T+1}
    v_add_f32 v{T+1}, {fbits(1e-5):#x}, v{T+1}
    v_cvt_pk_bf16_f32 v{T+1}, v{T+1}, v{T+1}
    v_lshlrev_b32 v{T+1}, 16, v{T+1}
    v_sqrt_f32 v{T+1}, v{T+1}
    s_nop 0
    v_cvt_pk_bf16_f32 v{T+1}, v{T+1}, v{T+1}
    v_lshlrev_b32 v{T+1}, 16, v{T+1}         ; sd
    v_rcp_f32 v{T+1}, v{T+1}""")
    a(f"s_add_u32 s26, s6, {WS['ST1']}\n s_addc_u32 s27, s7, 0"); srd(a, 32, 26, 27, 16384)
    a(f"""s_lshl_b32 s21, s12, 7
    v_lshlrev_b32 v8, 3, v3
    v_cmp_eq_u32 vcc, 0, v4
    s_and_saveexec_b64 s[44:45], vcc
    buffer_store_dwordx2 v[{T}:{T+1}], v8, s[32:35], s21 offen
    s_mov_b64 exec, s[44:45]
    s_waitcnt lgkmcnt(0)
    s_barrier""")
    a(f"s_add_u32 s26, s6, {WS['XT']}\n s_addc_u32 s27, s7, 0"); srd(a, 28, 26, 27, 576*4096)
    a(f"""v_bfe_u32 v3, v2, 4, 1             ; o
    v_lshrrev_b32 v4, 5, v2            ; dh
    v_bfe_u32 v5, v2, 2, 2             ; r
    v_and_b32 v6, 3, v2                ; c4
    v_lshlrev_b32 v7, 3, v3
    v_add_u32 v7, v7, v5
    v_mul_u32_u24 v7, {RS}, v7          ; (8o + r)*RS
    v_lshlrev_b32 v8, 5, v4
    v_lshlrev_b32 v9, 3, v6
    v_add3_u32 v7, v7, v8, v9          ; + dh*32 + c4*8
    s_lshl_b32 s20, s17, 6
    v_add_u32 v7, s20, v7              ; + w*64 (p=w)
    v_and_b32 v10, 15, v2
    v_lshlrev_b32 v11, 4, v4
    v_add_u32 v10, v10, v11
    v_lshlrev_b32 v10, 12, v10
    v_lshlrev_b32 v11, 4, v3
    v_add_u32 v10, v10, v11            ; + o*16 bytes
    s_lshl_b32 s21, s12, 5             ; tb*16*2
    s_lshl_b32 s22, s17, 17            ; w*32*4096
    s_add_u32 s21, s21, s22""")
    for it in range(5):
        if it == 4: a(f"s_cmp_ge_u32 s17, 2\n s_cbranch_scc1 {name}_fin")
        o = 16 + 4*(it % 2)
        a(f"""ds_read_b64_tr_b16 v[{o}:{o+1}], v7 offset:{it*256}
        ds_read_b64_tr_b16 v[{o+2}:{o+3}], v7 offset:{it*256 + 4*RS}
        s_add_u32 s23, s21, {it*4*32*4096}
        s_waitcnt lgkmcnt(0)
        buffer_store_dwordx4 v[{o}:{o+3}], v10, s[28:31], s23 offen""")
    a(f"s_branch {name}_fin")
    a.label(f"{name}_D")
    a(f"""s_load_dwordx2 s[8:9], s[0:1], {KA['wout']}
    s_sub_u32 s12, s2, {oD}            ; JJ
    s_mul_i32 s13, s12, 7282
    s_lshr_b32 s13, s13, 16            ; q
    s_mul_i32 s14, s13, 9
    s_sub_u32 s14, s12, s14            ; r
    s_mul_i32 s15, s13, 18             ; 18q
    s_lshl_b32 s16, s14, 1             ; 2r
    s_add_u32 s18, s15, s16            ; r<4: T0 = 18q + 2r
    s_add_u32 s19, s18, 1              ;      T1 = T0+1
    s_cmp_ge_u32 s14, 4
    s_cselect_b32 s20, 1, 0
    s_add_u32 s18, s18, s20            ; r in4..7: T0 = 18q + 9 + 2(r-4) = 18q + 2r + 1
    s_add_u32 s19, s19, s20
    s_cmp_eq_u32 s14, 8
    s_cbranch_scc0 {name}_D1
    s_add_u32 s18, s15, 8
    s_add_u32 s19, s15, 17""")
    a.label(f"{name}_D1")
    a(f"""s_mul_i32 s18, s18, {16*1152}
    s_mul_i32 s19, s19, {16*1152}
    s_sub_u32 s19, s19, {16*1152}
    s_waitcnt lgkmcnt(0)""")
    srd(a, 28, 8, 9, 2304*1152)
    for k in range(9):
        a(f"""v_add_u32 v3, {256*k}, v0
        v_mul_u32_u24 v4, 58255, v3
        v_lshrrev_b32 v4, 22, v4            ; row
        v_mul_u32_u24 v5, 72, v4
        v_sub_u32 v5, v3, v5                ; chunk
        v_lshlrev_b32 v5, 4, v5
        v_mul_u32_u24 v6, 1152, v4
        v_add_u32 v6, v6, v5
        v_mov_b32 v7, s18
        v_mov_b32 v8, s19
        v_cmp_gt_u32 vcc, 16, v4
        v_mul_u32_u24 v9, {RS}, v4
        v_add_u32 v{60+k}, v9, v5
        v_cndmask_b32 v7, v8, v7, vcc
        v_add_u32 v6, v6, v7
        buffer_load_dwordx4 v[{16+4*k}:{16+4*k+3}], v6, s[28:31], 0 offen""")
    a("s_waitcnt vmcnt(0)")
    for k in range(9): a(f"ds_write_b128 v{60+k}, v[{16+4*k}:{16+4*k+3}]")
    a(f"s_add_u32 s26, s6, {WS['WOF']}\n s_addc_u32 s27, s7, 0"); srd(a, 28, 26, 27, 8*72*5120)
    a(f"""v_lshrrev_b32 v3, 4, v2            ; g
    v_bfe_u32 v5, v2, 2, 2             ; r
    v_and_b32 v6, 3, v2
    v_lshlrev_b32 v3, 2, v3
    v_add_u32 v3, v3, v5
    v_mul_u32_u24 v3, {RS}, v3
    v_lshlrev_b32 v6, 3, v6
    v_add_u32 v3, v3, v6
    s_mul_i32 s20, s17, 288
    v_add_u32 v3, s20, v3
    v_lshlrev_b32 v4, 4, v2
    s_mul_i32 s21, s17, {2*72*5120}
    s_mul_i32 s22, s12, 5120
    s_add_u32 s21, s21, s22
    s_waitcnt lgkmcnt(0)
    s_barrier""")
    for k in range(10):
        db, n = divmod(k, 5)
        o = 16 + 4*(k % 4)
        a(f"""ds_read_b64_tr_b16 v[{o}:{o+1}], v3 offset:{db*144 + n*32}
        ds_read_b64_tr_b16 v[{o+2}:{o+3}], v3 offset:{db*144 + n*32 + 16*RS}
        s_add_u32 s23, s21, {db*72*5120 + n*1024}
        s_waitcnt lgkmcnt(0)
        buffer_store_dwordx4 v[{o}:{o+3}], v4, s[28:31], s23 offen""")
    a(f"s_branch {name}_fin")
    a.label(f"{name}_C")
    ES = 528; E1B = 0; E2B = 64*ES; KX = E2B + 32*ES
    a(f"""s_sub_u32 s12, s2, {oC}            ; d
    s_load_dwordx4 s[28:31], s[0:1], {KA['are']}
    s_load_dwordx4 s[32:35], s[0:1], {KA['bre']}
    s_load_dwordx4 s[36:39], s[0:1], {KA['cre']}
    s_load_dwordx2 s[40:41], s[0:1], {KA['logdt']}
    v_and_b32 v3, 127, v0              ; n
    v_lshlrev_b32 v4, 1, v3
    s_lshl_b32 s13, s12, 8             ; d*256
    v_add_u32 v4, s13, v4
    s_lshl_b32 s14, s12, 1
    s_and_b32 s15, s14, 2
    s_and_b32 s14, s14, 0xfffffffc
    s_waitcnt lgkmcnt(0)
    s_add_u32 s40, s40, s14
    s_addc_u32 s41, s41, 0
    s_load_dword s16, s[40:41], 0
    global_load_ushort v8, v4, s[28:29]
    global_load_ushort v9, v4, s[30:31]
    global_load_ushort v10, v4, s[32:33]
    global_load_ushort v11, v4, s[34:35]
    global_load_ushort v12, v4, s[36:37]
    global_load_ushort v13, v4, s[38:39]""")
    SA = 40
    for k in range(9):
        a(f"""v_lshlrev_b32 v5, 3, v0
        v_sub_u32 v5, {2048-k}, v5
        v_cvt_f32_u32 v5, v5
        v_cvt_pk_bf16_f32 v5, v5, v5
        v_lshlrev_b32 v5, 16, v5
        v_cvt_u32_f32 v5, v5
        v_lshlrev_b32 v{SA+k}, 2, v5""")
    a(f"""s_waitcnt lgkmcnt(0)
    s_lshl_b32 s15, s15, 3
    s_lshr_b32 s16, s16, s15
    s_lshl_b32 s16, s16, 16
    v_mov_b32 v14, s16
    v_mul_f32 v15, {fbits(LOG2E):#x}, v14
    s_mov_b32 s18, {fbits(LOG2E):#x}
    v_fma_f32 v16, v14, s18, -v15
    v_fmac_f32 v16, {fbits(LOG2E - float.fromhex(struct_f32hex(LOG2E))):#x}, v14
    v_exp_f32 v15, v15
    v_mul_f32 v16, {fbits(math.log(2.0)):#x}, v16
    s_nop 0
    v_fma_f32 v15, v15, v16, v15
    v_cvt_pk_bf16_f32 v15, v15, v15
    v_lshlrev_b32 v15, 16, v15          ; dt
    s_waitcnt vmcnt(0)""")
    for k in range(6): a(f"v_lshlrev_b32 v{8+k}, 16, v{8+k}")
    ARE, AIM, CBR, CBI = 20, 21, 22, 23
    a(f"""v_mul_f32 v{ARE}, v15, v8
    v_mul_f32 v{AIM}, v15, v9
    v_mul_f32 v10, v15, v10
    v_mul_f32 v11, v15, v11
    v_mul_f32 v{CBR}, v12, v10
    v_fma_f32 v{CBR}, -v13, v11, v{CBR}
    v_mul_f32 v{CBI}, v12, v11
    v_fmac_f32 v{CBI}, v13, v10""")
    def cexp(m, dr, di):
        a(f"""v_mul_f32 v5, {fbits(float(m)):#x}, v{ARE}
        v_mul_f32 v5, {fbits(LOG2E):#x}, v5
        v_mul_f32 v6, {fbits(float(m)):#x}, v{AIM}
        v_mul_f32 v6, {fbits(1.0/(2*math.pi)):#x}, v6
        v_fract_f32 v6, v6
        v_exp_f32 v5, v5
        v_cos_f32 v{dr}, v6
        v_sin_f32 v{di}, v6
        s_nop 0
        v_mul_f32 v{dr}, v{dr}, v5
        v_mul_f32 v{di}, v{di}, v5""")
    def cmul(dr, di, xr, xi, yr, yi):
        a(f"""v_mul_f32 v{dr}, v{xr}, v{yr}
        v_mul_f32 v{di}, v{xr}, v{yi}
        v_fma_f32 v{dr}, -v{xi}, v{yi}, v{dr}
        v_fmac_f32 v{di}, v{xi}, v{yr}""")
    a(f"v_lshlrev_b32 v7, 2, v3          ; n*4")
    WR, WI = 24, 25
    cur = [(26, 27), (28, 29)]
    a(f"s_cmp_ge_u32 s17, 2\n s_cbranch_scc1 {name}_C1")
    cexp(1, WR, WI)
    a(f"v_mov_b32 v26, 1.0\n v_mov_b32 v27, 0")
    for q in range(32):
        r, i = cur[q % 2]
        a(f"v_cvt_pk_bf16_f32 v30, v{r}, -v{i}\n ds_write_b32 v7, v30 offset:{E2B + q*ES}")
        if q < 31: cmul(*cur[(q+1) % 2], r, i, WR, WI)
    cexp(32, WR, WI)
    a(f"v_mov_b32 v26, v{CBR}\n v_mov_b32 v27, v{CBI}")
    for p in range(16):
        r, i = cur[p % 2]
        a(f"v_cvt_pk_bf16_f32 v30, v{r}, v{i}\n ds_write_b32 v7, v30 offset:{E1B + p*ES}")
        if p < 15: cmul(*cur[(p+1) % 2], r, i, WR, WI)
    a(f"s_branch {name}_C2")
    a.label(f"{name}_C1")
    cexp(512, 30, 31)
    cmul(26, 27, 30, 31, CBR, CBI)
    cexp(32, WR, WI)
    for p in range(16, 64):
        r, i = cur[p % 2]
        a(f"v_cvt_pk_bf16_f32 v30, v{r}, v{i}\n ds_write_b32 v7, v30 offset:{E1B + p*ES}")
        cmul(*cur[(p+1) % 2], r, i, WR, WI)
    a("s_nop 1")
    for sh in (8, 4, 2, 1): a(f"v_add_f32_dpp v26, v26, v26 row_ror:{sh} row_mask:0xf bank_mask:0xf\n s_nop 1")
    a(f"""v_and_b32 v5, 15, v0
    v_lshrrev_b32 v6, 4, v3            ; n>>4 : 0..7
    v_lshlrev_b32 v6, 2, v6
    v_cmp_eq_u32 vcc, 0, v5
    s_and_saveexec_b64 s[44:45], vcc
    ds_write_b32 v6, v26 offset:{KX}
    s_mov_b64 exec, s[44:45]""")
    a.label(f"{name}_C2")
    a("s_waitcnt lgkmcnt(0)\n s_barrier")
    ACC = 64
    a(f"s_cmp_ge_u32 s17, 2\n s_cbranch_scc1 {name}_C3")
    a(f"""v_and_b32 v5, 31, v2
    v_mul_u32_u24 v5, {ES}, v5
    v_lshrrev_b32 v6, 5, v2
    v_lshlrev_b32 v6, 4, v6
    v_add_u32 v5, v5, v6
    s_mul_i32 s20, s17, {32*ES}
    v_add_u32 v6, s20, v5              ; A addr""")
    for i in range(16): a(f"v_mov_b32 v{ACC+i}, 0")
    FA = 80
    sch = LgkmSched(a)
    def rd(j):
        sl = FA + 8*(j % 4)
        return [(f"ds_read_b128 v[{sl}:{sl+3}], v6 offset:{E1B + j*32}", range(sl, sl+4)), (f"ds_read_b128 v[{sl+4}:{sl+7}], v5 offset:{E2B + j*32}", range(sl+4, sl+8))]
    for j in range(3):
        for t, r in rd(j): a(t); sch.issue(r)
    for j in range(16):
        if j + 3 < 16:
            for t, r in rd(j+3): a(t); sch.issue(r)
        sl = FA + 8*(j % 4)
        sch.need(range(sl, sl+8))
        a(f"v_mfma_f32_32x32x16_bf16 v[{ACC}:{ACC+15}], v[{sl}:{sl+3}], v[{sl+4}:{sl+7}], v[{ACC}:{ACC+15}]")
    a.label(f"{name}_C3")
    a("s_barrier")
    a(f"s_cmp_ge_u32 s17, 2\n s_cbranch_scc1 {name}_C4")
    a(f"""v_and_b32 v5, 31, v2
    v_lshrrev_b32 v6, 5, v2
    v_lshlrev_b32 v6, 9, v6            ; 4h*32*4
    v_lshlrev_b32 v5, 2, v5
    v_add_u32 v5, v5, v6
    s_lshl_b32 s20, s17, 12            ; 32w*128
    v_add_u32 v5, s20, v5
    s_nop 7""")
    for i in range(16):
        a(f"ds_write_b32 v5, v{ACC+i} offset:{(8*(i>>2) + (i&3))*128}")
    a(f"s_branch {name}_C5")
    a.label(f"{name}_C4")
    a(f"""s_cmp_eq_u32 s17, 2
    s_cbranch_scc0 {name}_C5
    v_mov_b32 v5, 0
    ds_read_b128 v[8:11], v5 offset:{KX}
    ds_read_b128 v[12:15], v5 offset:{KX+16}
    s_waitcnt lgkmcnt(0)
    v_add_f32 v8, v8, v9
    v_add_f32 v10, v10, v11
    v_add_f32 v12, v12, v13
    v_add_f32 v14, v14, v15
    v_add_f32 v8, v8, v10
    v_add_f32 v12, v12, v14
    v_add_f32 v8, v8, v12
    ds_write_b32 v5, v8 offset:8192""")
    a.label(f"{name}_C5")
    a("s_waitcnt lgkmcnt(0)\n s_barrier")
    G = 8
    for k in range(9): a(f"ds_read_b32 v{G+k}, v{SA+k}")
    a(f"s_mul_i32 s20, s12, {KRS}\n s_add_u32 s20, s20, {WS['KR']}\n s_add_u32 s26, s6, s20\n s_addc_u32 s27, s7, 0"); srd(a, 28, 26, 27, KRS)
    a(f"""v_lshlrev_b32 v5, 4, v0
    v_cmp_eq_u32 vcc, 0, v0
    s_waitcnt lgkmcnt(0)
    v_cndmask_b32 v{G}, v{G}, 0, s[46:47]""".replace(f"v_cndmask_b32 v{G}, v{G}, 0, s[46:47]", "s_nop 0"))
    for k in range(4): a(f"v_cvt_pk_bf16_f32 v{20+k}, v{G+2*k}, v{G+2*k+1}")
    for k in range(4): a(f"v_cvt_pk_bf16_f32 v{24+k}, v{G+2*k+1}, v{G+2*k+2}")
    a("buffer_store_dwordx4 v[20:23], v5, s[28:31], 0 offen")
    a(f"s_mov_b32 s21, 4352\n buffer_store_dwordx4 v[24:27], v5, s[28:31], s21 offen")
    a(f"""v_cmp_gt_u32 vcc, 16, v0
    s_and_saveexec_b64 s[44:45], vcc
    s_cbranch_execz {name}_fin
    v_mov_b32 v6, 0
    ds_read_b32 v28, v6
    v_mov_b32 v29, 0
    v_mov_b32 v30, 0
    v_mov_b32 v31, 0
    v_mov_b32 v32, 0
    v_mov_b32 v33, 0
    v_mov_b32 v34, 0
    v_mov_b32 v35, 0
    v_cmp_eq_u32 vcc, 0, v0
    s_waitcnt lgkmcnt(0)
    v_cvt_pk_bf16_f32 v28, v28, v29
    v_cndmask_b32 v28, 0, v28, vcc
    s_mov_b32 s22, 4096
    s_mov_b32 s23, {4352+4096}
    buffer_store_dwordx4 v[28:31], v5, s[28:31], s22 offen
    buffer_store_dwordx4 v[32:35], v5, s[28:31], s23 offen""")
    a.label(f"{name}_fin")
    if stamp:
        a("s_mov_b64 exec, -1")
        for k in range(6): mark(a, k, True)
        emit_stamp(a, name)
    a.label(f"{name}_end")
    a("s_endpgm")
    return dict(name=name, body=a.text(), vgpr=128 if not stamp else 256, sgpr=96, accum=128 if not stamp else 256, grid=(tot,1,1), block=(256,1,1), lds=KX+64)

import struct
def struct_f32hex(x):
    return float.hex(struct.unpack('<f', struct.pack('<f', x))[0])
```

```python
from asmgen import *
from gen_common import *
from gen_k3 import fbits, pk

KRS = 8704
CS = 4608
RES = {0:0, 7:5, 6:9, 5:13, 4:1, 3:5, 2:9, 1:13}
UB = 8*CS
GSCALE = (1.5957691216057308 * 1.4426950408889634 * 0.044715) ** (1.0/3.0)

def unpack(a, src, lo, hi):
    a(f"v_lshlrev_b32 v{lo}, 16, v{src}\n v_and_b32 v{hi}, 0xffff0000, v{src}")

def gen_k2(name="conv_kernel", stamp=False, wscale=1.0, dbgy=False, dbgh=False):
    a = A()
    NCONV = 576; NW = 144
    a(f"""s_cmp_ge_u32 s2, {NCONV+NW}
    s_cbranch_scc1 {name}_end
    s_load_dwordx2 s[6:7], s[0:1], {KA['ws']}
    s_load_dwordx2 s[8:9], s[0:1], {KA['dskip']}
    s_load_dwordx2 s[10:11], s[0:1], {KA['win']}""")
    if stamp: stamp_begin(a); a('v_mov_b32 v255, v0')
    a(f"""v_lshrrev_b32 v1, 6, v0
    v_and_b32 v2, 63, v0            ; lane
    v_readfirstlane_b32 s17, v1     ; wave
    s_cmp_ge_u32 s2, {NCONV}
    s_cbranch_scc1 {name}_wjob""")
    LN = 46
    a(f"v_mov_b32 v{LN}, v2\n s_waitcnt lgkmcnt(0)")
    a(f"s_mul_i32 s20, s2, {KRS}\n s_add_u32 s20, s20, {WS['KR']}\n s_add_u32 s26, s6, s20\n s_addc_u32 s27, s7, 0"); srd(a, 28, 26, 27, KRS)
    a(f"""v_lshlrev_b32 v3, 4, v2
    s_lshl_b32 s20, s17, 2
    v_add_u32 v3, s20, v3             ; lane*16 + 4w   (R0)
    v_add_u32 v4, 4352, v3            ; (R1)""")
    for par in range(2):
        vals = [ (2*w+par)*CS + 16*RES[2*w+par] for w in range(4)]
        a(f"s_mov_b32 s{21+par}, {vals[0]}")
        for w in range(1, 4):
            a(f"s_cmp_eq_u32 s17, {w}\n s_cselect_b32 s{21+par}, {vals[w]}, s{21+par}")
    a("s_mov_b32 s23, 0\n s_mov_b32 s24, 4096")
    for par in range(2):
        v = 3 + par
        a(f"s_mov_b32 m0, s{21+par}\n s_nop 0")
        for j in range(4): a(f"buffer_load_dwordx4 v{v}, s[28:31], s23 offen offset:{j*1024} lds")
    a("s_mov_b64 s[44:45], exec\n s_mov_b64 exec, 15")
    for par in range(2):
        v = 3 + par
        a(f"s_add_u32 m0, s{21+par}, 4096\n s_nop 0\n buffer_load_dwordx4 v{v}, s[28:31], s24 offen lds")
    a("s_mov_b64 exec, s[44:45]")
    X = 8; ST = 12; H = 28; XF = 32; T = 48
    a(f"s_lshl_b32 s20, s2, 12\n s_add_u32 s20, s20, {WS['XT']}\n s_add_u32 s26, s6, s20\n s_addc_u32 s27, s7, 0"); srd(a, 32, 26, 27, 4096)
    a(f"s_add_u32 s26, s6, {WS['ST1']}\n s_addc_u32 s27, s7, 0"); srd(a, 36, 26, 27, 16384)
    a(f"""v_lshlrev_b32 v5, 4, v0
    buffer_load_dwordx4 v[{X}:{X+3}], v5, s[32:35], 0 offen
    v_lshlrev_b32 v6, 6, v0""")
    for k in range(4): a(f"buffer_load_dwordx4 v[{ST+4*k}:{ST+4*k+3}], v6, s[36:39], 0 offen offset:{16*k}")
    a(f"""s_lshl_b32 s20, s2, 2
    s_add_u32 s20, s20, {WS['MOD']}
    s_add_u32 s26, s6, s20
    s_addc_u32 s27, s7, 0
    s_load_dword s40, s[26:27], 0
    s_load_dword s41, s[26:27], {576*4}
    s_load_dword s42, s[26:27], {2*576*4}
    s_lshl_b32 s20, s2, 1
    s_and_b32 s46, s20, 2
    s_and_b32 s20, s20, 0xfffffffc
    s_add_u32 s8, s8, s20
    s_addc_u32 s9, s9, 0
    s_load_dword s43, s[8:9], 0""")
    a(f"""v_mov_b32 v{T}, 0
    v_mov_b32 v{T+1}, 0
    v_mov_b32 v{T+2}, 0
    v_mov_b32 v{T+3}, 0
    v_cmp_gt_u32 vcc, 160, v0
    s_and_saveexec_b64 s[44:45], vcc
    ds_write_b128 v5, v[{T}:{T+3}] offset:{UB}
    s_mov_b64 exec, s[44:45]""")
    a(f"""v_lshrrev_b32 v7, 2, v0
    v_mul_u32_u24 v7, 80, v7
    v_and_b32 v{T}, 3, v0
    v_lshlrev_b32 v{T}, 4, v{T}
    v_add_u32 v7, v7, v{T}
    s_waitcnt lgkmcnt(0)
    s_lshl_b32 s46, s46, 3
    s_lshr_b32 s43, s43, s46
    s_lshl_b32 s43, s43, 16
    v_mov_b32 v{T+4}, s41
    v_add_f32 v{T+4}, 1.0, v{T+4}
    v_cvt_pk_bf16_f32 v{T+4}, v{T+4}, v{T+4}
    v_lshlrev_b32 v{T+4}, 16, v{T+4}
    s_waitcnt vmcnt(0)""")
    for k in range(4): unpack(a, X+k, XF+2*k, XF+2*k+1)
    for e in range(8): a(f"v_sub_f32 v{T+8+e}, v{XF+e}, v{ST+2*e}")
    def rnd(base):
        for k in range(4): a(f"v_cvt_pk_bf16_f32 v{H+k}, v{base+2*k}, v{base+2*k+1}")
        for k in range(4): unpack(a, H+k, base+2*k, base+2*k+1)
    rnd(T+8)
    for e in range(8): a(f"v_mul_f32 v{T+8+e}, v{T+8+e}, v{ST+2*e+1}")
    rnd(T+8)
    for e in range(8): a(f"v_mul_f32 v{T+8+e}, v{T+8+e}, v{T+4}")
    rnd(T+8)
    for e in range(8): a(f"v_add_f32 v{T+8+e}, s40, v{T+8+e}")
    for k in range(4): a(f"v_cvt_pk_bf16_f32 v{H+k}, v{T+8+2*k}, v{T+8+2*k+1}")
    a(f"ds_write_b128 v7, v[{H}:{H+3}] offset:{UB+32*80}")
    mark(a, 0, stamp)
    AA = 60; AB_ = 61
    a(f"""v_and_b32 v{T}, 7, v{LN}                 ; rho
    v_sub_u32 v{T+1}, 8, v{T}
    v_and_b32 v{T+1}, 7, v{T+1}              ; c
    v_mul_u32_u24 v{T+2}, {CS}, v{T+1}
    v_and_b32 v{T+3}, 3, v{T}
    v_lshlrev_b32 v{T+3}, 6, v{T+3}          ; 64*(rho&3)
    v_add_u32 v{T+2}, v{T+2}, v{T+3}
    v_bfe_u32 v{T+3}, v{LN}, 3, 2            ; beta
    v_lshrrev_b32 v{T+5}, 5, v{LN}           ; h
    v_sub_u32 v{T+3}, v{T+5}, v{T+3}         ; h - beta
    v_lshlrev_b32 v{T+3}, 4, v{T+3}
    v_add_u32 v{AA}, v{T+2}, v{T+3}
    v_add_u32 v{AA}, 4096, v{AA}
    v_and_b32 v{T}, 31, v{LN}
    v_mul_u32_u24 v{AB_}, 80, v{T}
    v_lshlrev_b32 v{T+5}, 4, v{T+5}
    v_add_u32 v{AB_}, v{AB_}, v{T+5}
    v_add_u32 v{AB_}, {UB+32*80}, v{AB_}""")
    ACC = 64
    for i in range(32): a(f"v_mov_b32 v{ACC+i}, 0")
    a("s_waitcnt lgkmcnt(0)\n s_barrier")
    mark(a, 1, stamp)
    FR = 96
    ranges = [(0, 24), (24, 48), (48, 80), (80, 128)]
    for w, (k0, k1) in enumerate(ranges):
        a.label(f"{name}_w{w}")
        if w < 3: a(f"s_cmp_eq_u32 s17, {w}\n s_cbranch_scc0 {name}_w{w+1}")
        dmax = (k1-1)//2
        a(f"v_subrev_u32 v62, {32*(k1-1) - 32}, v{AA}\n v_subrev_u32 v63, {dmax*80}, v{AB_}")
        sch = LgkmSched(a)
        def rd(k):
            sl = FR + 12*(k % 3)
            out = [(f"ds_read_b128 v[{sl}:{sl+3}], v62 offset:{32*(k1-1-k)}", range(sl, sl+4))]
            dl = k//2; j0 = 16 if k % 2 == 0 else 0
            bo = (dmax - dl)*80 + j0*2
            if k < 64: out.append((f"ds_read_b128 v[{sl+4}:{sl+7}], v63 offset:{bo}", range(sl+4, sl+8)))
            out.append((f"ds_read_b128 v[{sl+8}:{sl+11}], v63 offset:{bo+2560}", range(sl+8, sl+12)))
            return out
        for k in (k0, k0+1):
            for t, r in rd(k): a(t); sch.issue(r)
        for k in range(k0, k1):
            if k + 2 < k1:
                for t, r in rd(k+2): a(t); sch.issue(r)
            sl = FR + 12*(k % 3)
            if k < 64:
                sch.need(range(sl, sl+8))
                a(f"v_mfma_f32_32x32x16_bf16 v[{ACC}:{ACC+15}], v[{sl}:{sl+3}], v[{sl+4}:{sl+7}], v[{ACC}:{ACC+15}]")
            sch.need(list(range(sl, sl+4)) + list(range(sl+8, sl+12)))
            a(f"v_mfma_f32_32x32x16_bf16 v[{ACC+16}:{ACC+31}], v[{sl}:{sl+3}], v[{sl+8}:{sl+11}], v[{ACC+16}:{ACC+31}]")
        if w < 3: a(f"s_branch {name}_conv_done")
    a.label(f"{name}_conv_done")
    mark(a, 2, stamp)
    a(f"""s_barrier
    v_and_b32 v{T}, 31, v{LN}
    v_mul_u32_u24 v{T}, 144, v{T}
    v_lshrrev_b32 v{T+1}, 5, v{LN}
    v_lshlrev_b32 v{T+1}, 4, v{T+1}
    v_add_u32 v{T}, v{T}, v{T+1}
    s_mul_i32 s20, s17, 9216
    v_add_u32 v{T}, s20, v{T}
    s_nop 7
    s_nop 3""")
    for tile in range(2):
        for q in range(4):
            c = ACC + 16*tile + 4*q
            a(f"ds_write_b128 v{T}, v[{c}:{c+3}] offset:{tile*4608 + q*32}")
    a(f"""s_waitcnt lgkmcnt(0)
    s_barrier
    v_lshrrev_b32 v{T}, 2, v0
    v_mul_u32_u24 v{T}, 144, v{T}           ; (tile*32 + a)*144
    v_and_b32 v{T+1}, 3, v0
    v_lshlrev_b32 v{T+1}, 5, v{T+1}
    v_add_u32 v{T}, v{T}, v{T+1}""")
    Y = 64
    for w in range(4):
        a(f"ds_read_b128 v[{Y+8*w}:{Y+8*w+3}], v{T} offset:{w*9216}\n ds_read_b128 v[{Y+8*w+4}:{Y+8*w+7}], v{T} offset:{w*9216+16}")
    a("s_waitcnt lgkmcnt(0)")
    for e in range(8): a(f"v_add_f32 v{Y+e}, v{Y+e}, v{Y+8+e}\n v_add_f32 v{Y+16+e}, v{Y+16+e}, v{Y+24+e}")
    for e in range(8): a(f"v_add_f32 v{Y+e}, v{Y+e}, v{Y+16+e}")
    if dbgy:
        for k in range(4): a(f"v_cvt_pk_bf16_f32 v{T+8+k}, v{Y+2*k}, v{Y+2*k+1}")
    if dbgh:
        for k in range(4): a(f"v_mov_b32 v{T+8+k}, v{H+k}")
    if dbgy or dbgh:
        a(f"s_lshl_b32 s20, s2, 12\n s_add_u32 s20, s20, {WS['X1T']}\n s_add_u32 s26, s6, s20\n s_addc_u32 s27, s7, 0"); srd(a, 32, 26, 27, 4096)
        a(f"buffer_store_dwordx4 v[{T+8}:{T+11}], v5, s[32:35], 0 offen\n s_branch {name}_fin")
    TH = 100
    for k in range(4): unpack(a, H+k, TH+2*k, TH+2*k+1)
    def rnd2(base):
        for k in range(4): a(f"v_cvt_pk_bf16_f32 v{T+8+k}, v{base+2*k}, v{base+2*k+1}")
        for k in range(4): unpack(a, T+8+k, base+2*k, base+2*k+1)
    for e in range(8): a(f"v_mul_f32 v{TH+e}, s43, v{TH+e}")
    rnd2(TH); rnd2(Y)
    for e in range(8): a(f"v_add_f32 v{Y+e}, v{Y+e}, v{TH+e}")
    rnd2(Y)
    for e in range(8): a(f"v_mul_f32 v{Y+e}, s42, v{Y+e}")
    rnd2(Y)
    for e in range(8): a(f"v_add_f32 v{Y+e}, v{Y+e}, v{XF+e}")
    for k in range(4): a(f"v_cvt_pk_bf16_f32 v{T+8+k}, v{Y+2*k}, v{Y+2*k+1}")
    a(f"s_lshl_b32 s20, s2, 12\n s_add_u32 s20, s20, {WS['X1T']}\n s_add_u32 s26, s6, s20\n s_addc_u32 s27, s7, 0"); srd(a, 32, 26, 27, 4096)
    a(f"buffer_store_dwordx4 v[{T+8}:{T+11}], v5, s[32:35], 0 offen")
    mark(a, 3, stamp); mark(a, 4, stamp); mark(a, 5, stamp)
    a(f"s_branch {name}_fin")
    a.label(f"{name}_wjob")
    a(f"s_sub_u32 s12, s2, {NCONV}\n s_waitcnt lgkmcnt(0)")
    LN = 70
    a(f"v_mov_b32 v{LN}, v2")
    a(f"s_lshl_b32 s20, s12, 6\n s_add_u32 s10, s10, s20\n s_addc_u32 s11, s11, 0"); srd(a, 28, 10, 11, 576*9216)
    a(f"""v_lshrrev_b32 v3, 2, v2
    v_and_b32 v4, 3, v2
    v_bfe_u32 v5, v2, 5, 1              ; (row>>3)&1
    v_lshlrev_b32 v5, 1, v5
    v_xor_b32 v4, v4, v5
    v_lshlrev_b32 v4, 4, v4
    v_mul_u32_u24 v3, 9216, v3
    v_add_u32 v3, v3, v4
    s_mul_i32 s21, s17, {9*16*9216}
    s_mul_i32 s22, s17, {9*1024}""")
    for n in range(9):
        a(f"s_add_u32 m0, s22, {n*1024}\n s_add_u32 s23, s21, {n*16*9216}\n buffer_load_dwordx4 v3, s[28:31], s23 offen lds")
    TB = 36864
    a(f"s_add_u32 s26, s6, {WS['MOD']}\n s_addc_u32 s27, s7, 0"); srd(a, 32, 26, 27, 6*576*4)
    a(f"""v_lshlrev_b32 v5, 2, v0
    s_mov_b32 s24, {4*576*4}
    s_mov_b32 s25, {3*576*4}""")
    for k in range(3):
        a(f"buffer_load_dword v{8+k}, v5, s[32:35], s24 offen offset:{k*1024}\n buffer_load_dword v{12+k}, v5, s[32:35], s25 offen offset:{k*1024}")
    a(f"s_add_u32 s26, s6, {WS['ST3']}\n s_addc_u32 s27, s7, 0"); srd(a, 36, 26, 27, 262144)
    a(f"""s_lshl_b32 s20, s12, 11
    v_lshlrev_b32 v6, 3, v0
    v_mov_b32 v16, 0xbf800000
    v_mov_b32 v17, 0xbf800000
    buffer_store_dwordx2 v[16:17], v6, s[36:39], s20 offen""")
    a("s_waitcnt vmcnt(0)")
    for k in range(3):
        a(f"v_add_f32 v{8+k}, 1.0, v{8+k}\n v_cvt_pk_bf16_f32 v{8+k}, v{8+k}, v{8+k}\n v_lshlrev_b32 v{8+k}, 16, v{8+k}")
    for k in range(3):
        if k == 2: a("v_cmp_gt_u32 vcc, 64, v0\n s_and_saveexec_b64 s[44:45], vcc")
        a(f"ds_write_b32 v5, v{8+k} offset:{TB+k*1024}\n ds_write_b32 v5, v{12+k} offset:{TB+2304+k*1024}")
    a("s_mov_b64 exec, s[44:45]\n s_waitcnt lgkmcnt(0)\n s_barrier")
    a(f"""s_and_b32 s18, s17, 1
    s_lshr_b32 s19, s17, 1
    s_lshl_b32 s20, s12, 1
    s_add_u32 s20, s20, s18              ; F
    s_cmp_ge_u32 s20, 144
    s_cselect_b32 s21, 0, 18             ; G*18 : z1 (F<144) -> G=1
    s_cselect_b32 s22, 144, 0
    s_sub_u32 s20, s20, s22              ; F' in 0..143
    s_mul_i32 s22, s20, 7282             ; jb = F'/9  (7282/65536 = 0.11111)
    s_lshr_b32 s22, s22, 16
    s_mul_i32 s23, s22, 9
    s_sub_u32 s23, s20, s23              ; i
    s_add_u32 s21, s21, s23              ; G*18 + i
    s_lshl_b32 s21, s21, 10
    s_mul_i32 s22, s22, {9*36864}
    s_add_u32 s21, s21, s22""")
    a(f"s_add_u32 s26, s6, {WS['WPF']}\n s_addc_u32 s27, s7, 0"); srd(a, 28, 26, 27, 16*9*36864)
    a(f"""v_lshrrev_b32 v3, 4, v{LN}
    v_bfe_u32 v4, v{LN}, 2, 2
    v_and_b32 v5, 3, v{LN}
    v_lshlrev_b32 v6, 3, v3
    v_add_u32 v6, v6, v4
    v_lshlrev_b32 v6, 6, v6              ; (8g+r)*64
    v_and_b32 v7, 1, v3
    v_xor_b32 v7, s18, v7
    v_lshlrev_b32 v7, 5, v7
    v_lshlrev_b32 v5, 3, v5
    v_add3_u32 v6, v6, v7, v5
    s_mul_i32 s22, s19, {9*2048}
    v_add_u32 v6, s22, v6
    v_lshlrev_b32 v7, 5, v3
    s_mul_i32 s22, s19, {9*128}
    v_add_u32 v7, s22, v7
    v_lshlrev_b32 v8, 4, v{LN}""")
    SC = 20; SS = 22
    a(f"v_mov_b32 v{SC}, 0\n v_mov_b32 v{SC+1}, 0\n v_mov_b32 v{SS}, 0\n v_mov_b32 v{SS+1}, 0")
    W4 = 24; WFp = 28; C1 = 36; SB = 44; PR = 52; O = 60
    for jj in range(9):
        a(f"""s_mul_i32 s22, s19, 9
        s_add_u32 s22, s22, {jj}
        s_lshr_b32 s23, s22, 1
        s_mul_i32 s23, s23, 36864
        s_and_b32 s22, s22, 1
        s_mul_i32 s22, s22, 9216
        s_add_u32 s23, s23, s22
        s_add_u32 s23, s23, s21
        ds_read_b64_tr_b16 v[{W4}:{W4+1}], v6 offset:{jj*2048}
        ds_read_b64_tr_b16 v[{W4+2}:{W4+3}], v6 offset:{jj*2048+256}
        ds_read_b128 v[{C1}:{C1+3}], v7 offset:{TB+jj*128}
        ds_read_b128 v[{C1+4}:{C1+7}], v7 offset:{TB+jj*128+16}
        ds_read_b128 v[{SB}:{SB+3}], v7 offset:{TB+2304+jj*128}
        ds_read_b128 v[{SB+4}:{SB+7}], v7 offset:{TB+2304+jj*128+16}
        s_waitcnt lgkmcnt(0)""")
        for k in range(4): unpack(a, W4+k, WFp+2*k, WFp+2*k+1)
        for k in range(4): pk(a, "v_pk_mul_f32", PR+2*k, [('p', WFp+2*k), ('p', C1+2*k)])
        for k in range(4): pk(a, "v_pk_fma_f32", SS, [('p', WFp+2*k), ('p', SB+2*k), ('p', SS)])
        o = O + 4*(jj % 2)
        for k in range(4): a(f"v_cvt_pk_bf16_f32 v{o+k}, v{PR+2*k}, v{PR+2*k+1}")
        for k in range(4): pk(a, "v_pk_add_f32", SC, [('p', SC), ('p', PR+2*k)])
        a(f"buffer_store_dwordx4 v[{o}:{o+3}], v8, s[28:31], s23 offen")
    RD = TB + 4608
    a(f"""v_add_f32 v{SC}, v{SC}, v{SC+1}
    v_add_f32 v{SS}, v{SS}, v{SS+1}
    v_lshlrev_b32 v3, 2, v{LN}
    s_lshl_b32 s22, s17, 8
    v_add_u32 v3, s22, v3
    ds_write_b32 v3, v{SC} offset:{RD}
    ds_write_b32 v3, v{SS} offset:{RD+1024}
    s_waitcnt lgkmcnt(0)
    s_barrier
    v_cmp_gt_u32 vcc, 32, v0
    s_and_saveexec_b64 s[44:45], vcc
    s_cbranch_execz {name}_fin
    v_lshrrev_b32 v3, 4, v0               ; tile
    v_and_b32 v4, 15, v0
    v_lshlrev_b32 v3, 8, v3
    v_lshlrev_b32 v4, 2, v4
    v_add_u32 v3, v3, v4""")
    for hh in range(2):
        for g in range(4):
            a(f"ds_read_b32 v{8+hh*4+g}, v3 offset:{RD+hh*512+g*64}\n ds_read_b32 v{16+hh*4+g}, v3 offset:{RD+1024+hh*512+g*64}")
    a("s_waitcnt lgkmcnt(0)")
    for k in range(1, 8): a(f"v_add_f32 v8, v8, v{8+k}\n v_add_f32 v16, v16, v{16+k}")
    a(f"s_add_u32 s26, s6, {WS['WCS']}\n s_addc_u32 s27, s7, 0"); srd(a, 28, 26, 27, 2*4608*4)
    a(f"""v_mul_f32 v16, {fbits(wscale):#x}, v16
    s_lshl_b32 s20, s12, 7
    v_lshlrev_b32 v4, 2, v0
    s_add_u32 s21, s20, {4608*4}
    buffer_store_dword v8, v4, s[28:31], s20 offen
    buffer_store_dword v16, v4, s[28:31], s21 offen""")
    a.label(f"{name}_fin")
    if stamp:
        a("s_mov_b64 exec, -1")
        emit_stamp(a, name)
    a.label(f"{name}_end")
    a("s_endpgm")
    return dict(name=name, body=a.text(), vgpr=136 if not stamp else 256, sgpr=96, accum=136 if not stamp else 256, grid=(NCONV+NW,1,1), block=(256,1,1), lds=46080)
```

```python
from asmgen import *
from gen_common import *

GELU_A1 = -1.5957691216057308 * 1.4426950408889634
GELU_A2 = GELU_A1 * 0.044715
import struct
def fbits(x): return struct.unpack('<I', struct.pack('<f', x))[0]

def gelu4(a, regs, t, sA1, sA2):
    n = len(regs)
    for k, r in enumerate(regs): a(f"v_mul_f32 v{t+k}, v{r}, v{r}")
    for k, r in enumerate(regs): a(f"v_fma_f32 v{t+k}, v{t+k}, {sA2}, v{t+n}") if False else None
    for k, r in enumerate(regs): a(f"v_fma_f32 v{t+k}, v{t+k}, {sA2}, {sA1}")
    for k, r in enumerate(regs): a(f"v_mul_f32 v{t+k}, v{t+k}, v{r}")
    for k, r in enumerate(regs): a(f"v_exp_f32 v{t+k}, v{t+k}")
    for k, r in enumerate(regs): a(f"v_add_f32 v{t+k}, 1.0, v{t+k}")
    for k, r in enumerate(regs): a(f"v_rcp_f32 v{t+k}, v{t+k}")
    if n == 1: a("s_nop 0")
    for k, r in enumerate(regs): a(f"v_mul_f32 v{r}, v{r}, v{t+k}")

def pair(r):
    return (f"v[{r}:{r+1}]", 0) if r % 2 == 0 else (f"v[{r-1}:{r}]", 1)
def pk(a, op, d, srcs):
    txt = []; lo = []; hi = []
    for kind, r in srcs:
        if kind == 'p': txt.append(f"v[{r}:{r+1}]"); lo.append(0); hi.append(1)
        elif kind == 'b':
            t, b = pair(r); txt.append(t); lo.append(b); hi.append(b)
        elif kind == 's': txt.append(f"s[{r}:{r+1}]"); lo.append(0); hi.append(1)
    mods = ""
    if any(lo): mods += " op_sel:[" + ",".join(map(str, lo)) + "]"
    if not all(hi): mods += " op_sel_hi:[" + ",".join(map(str, hi)) + "]"
    a(f"{op} v[{d}:{d+1}], " + ", ".join(txt) + mods)
def gelu_pk(a, pairs, t, cA1, cA2, cONE):
    n = len(pairs)
    for k, r in enumerate(pairs): pk(a, "v_pk_mul_f32", t+2*k, [('p', r), ('p', r)])
    for k, r in enumerate(pairs): pk(a, "v_pk_fma_f32", t+2*k, [('p', t+2*k), ('s', cA2), ('p', cA1)])
    for k, r in enumerate(pairs): pk(a, "v_pk_mul_f32", t+2*k, [('p', t+2*k), ('p', r)])
    for k in range(2*n): a(f"v_exp_f32 v{t+k}, v{t+k}")
    for k, r in enumerate(pairs): pk(a, "v_pk_add_f32", t+2*k, [('p', t+2*k), ('p', cONE)])
    for k in range(2*n): a(f"v_rcp_f32 v{t+k}, v{t+k}")
    if n == 1: a("s_nop 0")
    for k, r in enumerate(pairs): pk(a, "v_pk_mul_f32", r, [('p', r), ('p', t+2*k)])

def gen_k3(name="gemm1_kernel", stamp=False, spread=15, slack=2, prio=True, tid=0, sc='sc1', noload=False, nomfma=False, nodot=False, stat='mfma', notr=False, now=False):
    import gen_common; gen_common.STAMP_TID = tid
    a = A()
    BUF = 53248; NST = 9
    RED = 3*BUF
    AB = 0
    WT = 1024
    AB3 = 4096
    STG = 5120
    a(f"""s_cmp_ge_u32 s2, 256
    s_cbranch_scc1 {name}_end
    s_load_dwordx2 s[6:7], s[0:1], {KA['ws']}""")
    if stamp: stamp_begin(a)
    a("""s_and_b32 s10, s2, 7            ; x
    s_lshr_b32 s11, s2, 3           ; q
    s_and_b32 s12, s10, 1
    s_lshl_b32 s12, s12, 3
    s_and_b32 s13, s11, 7
    s_add_u32 s12, s12, s13         ; ib
    s_lshr_b32 s14, s10, 1
    s_lshl_b32 s14, s14, 2
    s_lshr_b32 s15, s11, 3
    s_add_u32 s14, s14, s15         ; jb
    v_lshrrev_b32 v1, 6, v0
    v_and_b32 v2, 63, v0            ; lane
    v_mov_b32 v255, v0
    v_readfirstlane_b32 s17, v1     ; wave
    s_nop 3
    s_and_b32 s18, s17, 3           ; wr
    s_lshr_b32 s19, s17, 2          ; G""")
    ACC = 0; WB = [72, 108]; XB = [144, 152]; AD = 160
    VX = 170; VX2 = 171; VW = 172; VW5 = 173; LN = 174; S1 = 176; S2 = 177; WC = 178; WSS = 179; T = 180; A1 = 200; SG = 204; ONES = 212
    a(f"v_mov_b32 v{LN}, v2")
    a(f"""v_and_b32 v3, 15, v2
    v_lshrrev_b32 v4, 4, v2
    s_and_b32 s20, s17, 1
    s_lshl_b32 s20, s20, 2
    v_or_b32 v5, s20, v4
    v_lshrrev_b32 v6, 1, v3
    v_xor_b32 v6, v6, v5
    v_lshlrev_b32 v6, 1, v6
    v_and_b32 v7, 1, v3
    v_or_b32 v6, v6, v7
    v_lshlrev_b32 v6, 4, v6
    v_lshlrev_b32 v4, 12, v4
    v_add_u32 v6, v6, v4
    s_lshl_b32 s20, s17, 15
    v_add_u32 v{VX}, s20, v6
    v_add_u32 v{VX2}, {16384-1024}, v{VX}
    v_lshlrev_b32 v8, 4, v2
    s_lshl_b32 s20, s17, 12
    v_add_u32 v{VW}, s20, v8
    s_lshl_b32 s21, s17, 10
    s_add_u32 s21, s21, 32768
    v_add_u32 v{VW5}, s21, v8
    s_lshl_b32 s22, s17, 11
    s_lshl_b32 s23, s17, 12
    s_lshl_b32 s24, s17, 10
    s_waitcnt lgkmcnt(0)""")
    a(f"s_lshl_b32 s20, s12, 8\n s_add_u32 s20, s20, {WS['X1T']}\n s_add_u32 s26, s6, s20\n s_addc_u32 s27, s7, 0"); srd(a, 28, 26, 27, 576*4096)
    a(f"s_mul_i32 s20, s14, {9*36864}\n s_add_u32 s20, s20, {WS['WPF']}\n s_add_u32 s26, s6, s20\n s_addc_u32 s27, s7, 0"); srd(a, 32, 26, 27, 9*36864)
    def issue(G, b, sX, sW):
        out = []
        if noload: return out
        out.append(f"s_add_u32 m0, s22, {b*BUF}\n s_nop 0\n buffer_load_dwordx4 v{VX}, s[28:31], s{sX} offen lds")
        out.append(f"buffer_load_dwordx4 v{VX2}, s[28:31], s{sX} offen offset:1024 lds")
        out.append(f"s_add_u32 m0, s23, {b*BUF+16384}\n s_nop 0\n buffer_load_dwordx4 v{VW}, s[32:35], s{sW} offen lds")
        for j in range(1, 4): out.append(f"buffer_load_dwordx4 v{VW}, s[32:35], s{sW} offen offset:{j*1024} lds")
        if G == 0: out.append(f"s_add_u32 m0, s24, {b*BUF+16384+32768}\n s_nop 0\n buffer_load_dwordx4 v{VW5}, s[32:35], s{sW} offen lds")
        return out
    a("s_mov_b32 s40, 0\n s_mov_b32 s41, 0")
    a(f"s_cmp_eq_u32 s19, 0\n s_cbranch_scc0 {name}_g1")
    for G in (0, 1):
        if G == 1: a.label(f"{name}_g1")
        per = 7 if G == 0 else 6
        def issue_now(st):
            for t in issue(G, st, 40, 41): a(t)
            a(f"s_add_u32 s40, s40, 262144\n s_add_u32 s41, s41, 36864")
        issue_now(0)
        if G == 0:
            a(f"""s_add_u32 s26, s6, {WS['WCS']}
            s_addc_u32 s27, s7, 0""")
            srd(a, 36, 26, 27, 2*4608*4)
            a(f"""v_subrev_u32 v3, 144, v255
            v_cmp_gt_u32 vcc, 144, v255
            v_add_u32 v4, 2304, v255
            s_nop 0
            v_cndmask_b32 v3, v3, v4, vcc
            s_mul_i32 s20, s14, 144
            v_add_u32 v3, s20, v3
            v_lshlrev_b32 v3, 2, v3
            buffer_load_dword v{WC}, v3, s[36:39], 0 offen
            v_add_u32 v3, {4608*4}, v3
            buffer_load_dword v{WSS}, v3, s[36:39], 0 offen""")
            extra = 2
        else:
            a(f"""s_add_u32 s26, s6, {WS['WCS']}
            s_addc_u32 s27, s7, 0""")
            srd(a, 36, 26, 27, 2*4608*4)
            a(f"""v_subrev_u32 v3, 144, v255
            s_mul_i32 s20, s14, 144
            v_add_u32 v3, s20, v3
            v_lshlrev_b32 v3, 2, v3
            buffer_load_dword v{WC}, v3, s[36:39], 0 offen
            v_add_u32 v3, {4608*4}, v3
            buffer_load_dword v{WSS}, v3, s[36:39], 0 offen""")
            extra = 2
        a(f"""v_lshrrev_b32 v3, 4, v{LN}
        v_bfe_u32 v4, v{LN}, 2, 2
        v_and_b32 v5, 3, v{LN}
        v_and_b32 v6, 1, v3
        v_lshlrev_b32 v6, 2, v6
        v_or_b32 v6, v6, v4               ; f
        v_lshlrev_b32 v3, 3, v3
        v_add_u32 v3, v3, v4
        v_lshlrev_b32 v3, 8, v3           ; (8g+r)*256
        v_lshlrev_b32 v5, 3, v5
        v_add_u32 v3, v3, v5
        s_lshl_b32 s20, s18, 1""")
        for u in range(2):
            a(f"""s_add_u32 s21, s20, {u}
            v_xor_b32 v7, s21, v6
            v_lshlrev_b32 v7, 5, v7
            v_add_u32 v7, v7, v3""")
            for b in range(3): a(f"v_add_u32 v{AD+3*b+u}, {b*BUF}, v7")
        a(f"v_lshlrev_b32 v8, 4, v{LN}")
        for b in range(3): a(f"v_add_u32 v{AD+3*b+2}, {b*BUF}, v8")
        for i in range(72): a(f"v_mov_b32 v{ACC+i}, 0")
        a(f"v_mov_b32 v{S1}, 0\n v_mov_b32 v{S2}, 0\n s_mov_b32 s42, 0x3f803f80")
        for k in range(8): a(f"v_mov_b32 v{SG+k}, 0")
        for k in range(4): a(f"v_mov_b32 v{ONES+k}, 0x3f803f80")
        sch = LgkmSched(a)
        def reads(step):
            st, h = step >> 1, step & 1
            b = st % 3; p = step & 1
            out = []
            for u in range(2):
                r = XB[p] + 4*u
                for e in range(2):
                    if notr: continue
                    out.append((f"ds_read_b64_tr_b16 v[{r+2*e}:{r+2*e+1}], v{AD+3*b+u} offset:{h*8192+e*1024}", range(r+2*e, r+2*e+2)))
            for i in range(9):
                r = WB[p] + 4*i
                if now: continue
                out.append((f"ds_read_b128 v[{r}:{r+3}], v{AD+3*b+2} offset:{16384+G*18432+(h*9+i)*1024}", range(r, r+4)))
            return out
        def step_code(step, dma=None):
            p = step & 1
            rl = reads(step + 1)
            pos = [int(k*spread/len(rl)) for k in range(len(rl))]
            dl = dma or []
            dpos = [1 + int(k*15/max(1, len(dl))) for k in range(len(dl))]
            xs = XB[p] + 4*G
            k = 0; m = 0; dk = 0; sk = 0
            for i in range(9):
                for u in range(2):
                    wr_ = WB[p] + 4*i; xr = XB[p] + 4*u; c = ACC + 8*i + 4*u
                    sch.need(list(range(wr_, wr_+4)) + list(range(xr, xr+4)), slack)
                    if nomfma: pass
                    elif G == 0: a(f"v_mfma_f32_16x16x32_bf16 v[{c}:{c+3}], v[{xr}:{xr+3}], v[{wr_}:{wr_+3}], v[{c}:{c+3}]")
                    else:      a(f"v_mfma_f32_16x16x32_bf16 v[{c}:{c+3}], v[{wr_}:{wr_+3}], v[{xr}:{xr+3}], v[{c}:{c+3}]")
                    while k < len(rl) and pos[k] <= m:
                        a(rl[k][0]); sch.issue(rl[k][1]); k += 1
                    while dk < len(dl) and dpos[dk] <= m:
                        a(dl[dk]); dk += 1
                    if stat == 'dot':
                        if m >= 2 and sk < 8 and m % 2 == 0:
                            rr = xs + (sk >> 1)
                            if nodot: pass
                            elif sk & 1: a(f"v_dot2_f32_bf16 v{S2}, v{rr}, v{rr}, v{S2}")
                            else: a(f"v_dot2_f32_bf16 v{S1}, v{rr}, s42, v{S1}")
                            sk += 1
                    elif stat == 'mfma':
                        if m == 5: a(f"v_mfma_f32_16x16x32_bf16 v[{SG}:{SG+3}], v[{xs}:{xs+3}], v[{xs}:{xs+3}], v[{SG}:{SG+3}]")
                        if m == 12: a(f"v_mfma_f32_16x16x32_bf16 v[{SG+4}:{SG+7}], v[{xs}:{xs+3}], v[{ONES}:{ONES+3}], v[{SG+4}:{SG+7}]")
                        sk = 8
                    elif stat in ('valu', 'pk'):
                        if m >= 2 and sk < 8 and m % 2 == 0:
                            rr = xs + (sk >> 1); t0 = SG + 4 + 2*((sk >> 1) & 1)
                            if stat == 'valu':
                                if sk & 1: a(f"v_add_f32 v{SG}, v{SG}, v{t0}\n v_add_f32 v{SG+1}, v{SG+1}, v{t0+1}\n v_fmac_f32 v{SG+2}, v{t0}, v{t0}\n v_fmac_f32 v{SG+3}, v{t0+1}, v{t0+1}")
                                else: a(f"v_lshlrev_b32 v{t0}, 16, v{rr}\n v_and_b32 v{t0+1}, 0xffff0000, v{rr}")
                            else:
                                if sk & 1: a(f"v_pk_add_f32 v[{SG}:{SG+1}], v[{SG}:{SG+1}], v[{t0}:{t0+1}]\n v_pk_fma_f32 v[{SG+2}:{SG+3}], v[{t0}:{t0+1}], v[{t0}:{t0+1}], v[{SG+2}:{SG+3}]")
                                else: a(f"v_lshlrev_b32 v{t0}, 16, v{rr}\n v_and_b32 v{t0+1}, 0xffff0000, v{rr}")
                            sk += 1
                    m += 1
            while k < len(rl):
                a(rl[k][0]); sch.issue(rl[k][1]); k += 1
            while dk < len(dl):
                a(dl[dk]); dk += 1
            assert sk == 8
        issue_now(1)
        a(f"s_waitcnt vmcnt({per})")
        mark(a, 0, stamp)
        a("s_barrier")
        mark(a, 1, stamp)
        issue_now(2)
        for t, r in reads(0): a(t); sch.issue(r)
        a("s_mov_b32 s43, 0")
        a.label(f"{name}_loop{G}")
        q0 = [set(s) for s in sch.q]
        for st in range(3):
            step_code(2*st)
            sch.drain(force=True)
            if st == 1:
                a(f"s_cmp_eq_u32 s43, 2\n s_cbranch_scc0 {name}_w{G}\n s_waitcnt vmcnt(0)")
                a.label(f"{name}_w{G}")
            a(f"s_waitcnt vmcnt({per})\n s_barrier")
            a(f"s_cmp_eq_u32 s43, 2\n s_cbranch_scc1 {name}_nd{G}_{st}")
            qs = [set(s) for s in sch.q]
            step_code(2*st+1, issue(G, st, 40, 41))
            a(f"s_add_u32 s40, s40, 262144\n s_add_u32 s41, s41, 36864\n s_branch {name}_jn{G}_{st}")
            qa = [set(s) for s in sch.q]
            a.label(f"{name}_nd{G}_{st}")
            sch.q = qs
            step_code(2*st+1)
            assert [set(s) for s in sch.q] == qa
            a.label(f"{name}_jn{G}_{st}")
        qe = [set(s) for s in sch.q]
        assert qe == q0[len(q0)-len(qe):]
        a(f"s_add_u32 s43, s43, 1\n s_cmp_lt_u32 s43, 3\n s_cbranch_scc1 {name}_loop{G}")
        sch.drain(force=True)
        mark(a, 2, stamp)
        if stat in ('valu', 'pk'):
            a(f"v_add_f32 v{S1}, v{SG}, v{SG+1}\n v_add_f32 v{S2}, v{SG+2}, v{SG+3}")
        elif stat == 'mfma':
            a(f"""s_nop 7
            v_and_b32 v{T}, 3, v{LN}
            v_cmp_eq_u32 vcc, 1, v{T}
            v_cmp_eq_u32 s[50:51], 2, v{T}
            v_cmp_eq_u32 s[52:53], 3, v{T}
            s_nop 1
            v_cndmask_b32 v{S2}, v{SG}, v{SG+1}, vcc
            v_cndmask_b32 v{S1}, v{SG+4}, v{SG+5}, vcc
            v_cndmask_b32 v{S2}, v{S2}, v{SG+2}, s[50:51]
            v_cndmask_b32 v{S1}, v{S1}, v{SG+6}, s[50:51]
            v_cndmask_b32 v{S2}, v{S2}, v{SG+3}, s[52:53]
            v_cndmask_b32 v{S1}, v{S1}, v{SG+7}, s[52:53]
            v_bfe_u32 v{T}, v{LN}, 2, 2
            v_lshrrev_b32 v{T+1}, 4, v{LN}
            v_cmp_eq_u32 vcc, v{T}, v{T+1}
            s_nop 1
            v_cndmask_b32 v{S1}, 0, v{S1}, vcc
            v_cndmask_b32 v{S2}, 0, v{S2}, vcc""")
        a(f"""v_and_b32 v{T}, 15, v{LN}
        v_lshrrev_b32 v{T+1}, 4, v{LN}
        s_lshl_b32 s20, s18, 5
        s_add_u32 s20, s20, {16*G}
        v_add_u32 v{T+2}, s20, v{T}
        v_lshlrev_b32 v{T+2}, 2, v{T+2}
        v_add_u32 v{T+2}, v{T+2}, v{T+1}
        v_lshlrev_b32 v{T+2}, 3, v{T+2}
        v_add_u32 v{T+2}, {RED}, v{T+2}
        s_nop 1
        ds_write_b64 v{T+2}, v[{S1}:{S1+1}]
        s_waitcnt vmcnt(0) lgkmcnt(0)
        s_barrier""")
        a(f"""v_cmp_gt_u32 vcc, 288, v255
        s_and_saveexec_b64 s[44:45], vcc
        s_cbranch_execz {name}_nowt{G}
        v_lshlrev_b32 v{T+3}, 2, v255
        v_cmp_gt_u32 vcc, 144, v255
        v_add_u32 v{T+4}, {144*4}, v{T+3}
        s_nop 0
        v_cndmask_b32 v{T+3}, v{T+4}, v{T+3}, vcc
        ds_write_b32 v{T+3}, v{WC} offset:{WT}
        ds_write_b32 v{T+3}, v{WSS} offset:{WT+576}""")
        a.label(f"{name}_nowt{G}")
        a("s_mov_b64 exec, s[44:45]")
        if G == 0:
            a(f"""s_cmp_lt_u32 s17, 2
            s_cbranch_scc0 {name}_nofin
            v_lshlrev_b32 v{T+3}, 5, v255
            v_add_u32 v{T+3}, {RED}, v{T+3}
            ds_read_b128 v[{T+4}:{T+7}], v{T+3}
            ds_read_b128 v[{T+8}:{T+11}], v{T+3} offset:16
            s_waitcnt lgkmcnt(0)
            v_add_f32 v{T+4}, v{T+4}, v{T+6}
            v_add_f32 v{T+5}, v{T+5}, v{T+7}
            v_add_f32 v{T+8}, v{T+8}, v{T+10}
            v_add_f32 v{T+9}, v{T+9}, v{T+11}
            v_add_f32 v{T+4}, v{T+4}, v{T+8}
            v_add_f32 v{T+5}, v{T+5}, v{T+9}
            v_mul_f32 v{T+4}, {fbits(1.0/576):#x}, v{T+4}        ; mean
            v_mul_f32 v{T+5}, {fbits(1.0/576):#x}, v{T+5}        ; E[x^2]
            v_fma_f32 v{T+5}, -v{T+4}, v{T+4}, v{T+5}
            v_max_f32 v{T+5}, 0, v{T+5}
            v_add_f32 v{T+5}, {fbits(1e-5):#x}, v{T+5}
            v_rsq_f32 v{T+6}, v{T+5}
            s_nop 0
            v_mul_f32 v{T+7}, v{T+6}, v{T+4}
            v_sub_f32 v{T+7}, 0, v{T+7}
            v_lshlrev_b32 v{T+3}, 2, v255
            ds_write_b32 v{T+3}, v{T+6} offset:{AB}
            ds_write_b32 v{T+3}, v{T+7} offset:{AB+512}""")
            a.label(f"{name}_nofin")
        a("s_waitcnt lgkmcnt(0)\n s_barrier")
        a(f"s_mov_b32 s46, {fbits(GELU_A2):#x}\n s_mov_b32 s47, {fbits(GELU_A2):#x}\n v_mov_b32 v{A1}, {fbits(GELU_A1):#x}\n v_mov_b32 v{A1+1}, {fbits(GELU_A1):#x}\n v_mov_b32 v{A1+2}, 1.0\n v_mov_b32 v{A1+3}, 1.0")
        TT = 72
        if G == 0:
            if prio: a("s_setprio 2")
            AV = TT; BV = TT+8; WCv = TT+16; WSv = TT+26; s1 = TT+36; s2 = TT+44; tt = TT+52
            a(f"""v_lshrrev_b32 v{T}, 4, v{LN}
            s_lshl_b32 s20, s18, 5
            v_lshlrev_b32 v{T}, 2, v{T}
            v_add_u32 v{T}, s20, v{T}
            v_lshlrev_b32 v{T}, 2, v{T}""")
            for u in range(2):
                a(f"ds_read_b128 v[{AV+4*u}:{AV+4*u+3}], v{T} offset:{AB+u*64}\n ds_read_b128 v[{BV+4*u}:{BV+4*u+3}], v{T} offset:{AB+512+u*64}")
            a(f"v_and_b32 v{T+1}, 15, v{LN}\n v_lshlrev_b32 v{T+1}, 2, v{T+1}")
            for i in range(9):
                a(f"ds_read_b32 v{WCv+i}, v{T+1} offset:{WT+i*64}")
            for k in range(16): a(f"v_mov_b32 v{s1+k}, 0")
            a("s_waitcnt lgkmcnt(4)")
            for i in range(9):
                a(f"ds_read_b32 v{WSv+i}, v{T+1} offset:{WT+576+i*64}")
            a("s_waitcnt lgkmcnt(0)")
            for i in range(9):
                prs = []
                for u in range(2):
                    c = ACC + 8*i + 4*u
                    for r in (0, 2): pk(a, "v_pk_fma_f32", tt+4*u+r, [('p', BV+4*u+r), ('b', WCv+i), ('b', WSv+i)])
                for u in range(2):
                    c = ACC + 8*i + 4*u
                    for r in (0, 2): pk(a, "v_pk_fma_f32", c+r, [('p', AV+4*u+r), ('p', c+r), ('p', tt+4*u+r)]); prs.append(c+r)
                gelu_pk(a, prs, tt, A1, 46, A1+2)
                for u in range(2):
                    c = ACC + 8*i + 4*u
                    for r in (0, 2): pk(a, "v_pk_add_f32", s1+4*u+r, [('p', s1+4*u+r), ('p', c+r)])
                    for r in (0, 2): pk(a, "v_pk_fma_f32", s2+4*u+r, [('p', c+r), ('p', c+r), ('p', s2+4*u+r)])
            mark(a, 3, stamp)
            a("s_nop 1")
            for sh in (8, 4, 2, 1):
                for k in range(16):
                    a(f"v_add_f32_dpp v{s1+k}, v{s1+k}, v{s1+k} row_ror:{sh} row_mask:0xf bank_mask:0xf")
            a(f"""v_and_b32 v{T+1}, 15, v{LN}
            v_cmp_eq_u32 vcc, 0, v{T+1}
            s_and_saveexec_b64 s[44:45], vcc""")
            for u in range(2):
                a(f"ds_write_b128 v{T}, v[{s1+4*u}:{s1+4*u+3}] offset:{STG+u*64}\n ds_write_b128 v{T}, v[{s2+4*u}:{s2+4*u+3}] offset:{STG+512+u*64}")
            a("s_mov_b64 exec, s[44:45]")
            a(f"""v_and_b32 v{T+2}, 31, v{LN}
            s_lshl_b32 s20, s18, 5
            v_add_u32 v{T+2}, s20, v{T+2}
            v_lshlrev_b32 v{T+6}, 2, v{T+2}
            v_lshlrev_b32 v{T+2}, 3, v{T+2}               ; *8
            s_waitcnt lgkmcnt(0)
            ds_read_b32 v{tt}, v{T+6} offset:{STG}
            ds_read_b32 v{tt+1}, v{T+6} offset:{STG+512}
            s_add_u32 s26, s6, {WS['ST3']}
            s_addc_u32 s27, s7, 0""")
            srd(a, 36, 26, 27, 16*16*128*8)
            a(f"""s_lshl_b32 s20, s12, 4
            s_add_u32 s21, s20, s14
            s_lshl_b32 s21, s21, 10                        ; (ib*16+jb)*1024
            s_lshl_b32 s20, s20, 10                        ; ib*16*1024
            v_cmp_gt_u32 vcc, 32, v{LN}
            s_and_saveexec_b64 s[44:45], vcc
            s_waitcnt lgkmcnt(0)
            buffer_store_dwordx2 v[{tt}:{tt+1}], v{T+2}, s[36:39], s21 offen {sc}
            s_mov_b64 exec, s[44:45]
            v_lshrrev_b32 v{T+3}, 5, v{LN}
            v_lshlrev_b32 v{T+3}, 13, v{T+3}               ; half*8*1024
            v_add_u32 v{T+3}, v{T+3}, v{T+2}
            v_add_u32 v{T+4}, 4096, v{T+3}
            s_mov_b32 s49, 0
            s_mov_b32 s48, 0xbf800000""")
            a.label(f"{name}_poll")
            for k in range(8):
                vv = T+3 if k < 4 else T+4
                a(f"buffer_load_dwordx2 v[{tt+2*k}:{tt+2*k+1}], v{vv}, s[36:39], s20 offen offset:{(k&3)*1024} {sc}")
            a("s_waitcnt vmcnt(0)")
            a(f"v_cmp_eq_u32 vcc, s48, v{tt+1}")
            for k in range(1, 8):
                a(f"v_cmp_eq_u32 s[50:51], s48, v{tt+2*k+1}\n s_or_b64 vcc, vcc, s[50:51]")
            a(f"""s_cmp_eq_u64 vcc, 0
            s_cbranch_scc1 {name}_got
            s_add_u32 s49, s49, 1
            s_cmp_lt_u32 s49, 0x40000
            s_cbranch_scc0 {name}_got
            s_sleep 1
            s_branch {name}_poll""")
            a.label(f"{name}_got")
            for k in range(1, 8):
                pk(a, "v_pk_add_f32", tt, [('p', tt), ('p', tt+2*k)])
            a(f"""v_mov_b32 v{tt+2}, v{tt}
            v_mov_b32 v{tt+3}, v{tt+1}
            s_nop 1
            v_permlane32_swap_b32 v{tt}, v{tt+2}
            v_permlane32_swap_b32 v{tt+1}, v{tt+3}
            s_nop 1
            v_add_f32 v{tt}, v{tt}, v{tt+2}
            v_add_f32 v{tt+1}, v{tt+1}, v{tt+3}
            v_mul_f32 v{tt}, {fbits(1.0/2304):#x}, v{tt}
            v_mul_f32 v{tt+1}, {fbits(1.0/2304):#x}, v{tt+1}
            v_fma_f32 v{tt+1}, -v{tt}, v{tt}, v{tt+1}
            v_max_f32 v{tt+1}, 0, v{tt+1}
            v_add_f32 v{tt+1}, {fbits(1e-5):#x}, v{tt+1}
            v_rsq_f32 v{tt+2}, v{tt+1}
            s_nop 0
            v_mul_f32 v{tt+3}, v{tt+2}, v{tt}
            v_sub_f32 v{tt+3}, 0, v{tt+3}
            ds_write_b32 v{T+6}, v{tt+2} offset:{AB3}
            ds_write_b32 v{T+6}, v{tt+3} offset:{AB3+512}
            s_waitcnt lgkmcnt(0)""")
            for u in range(2):
                a(f"ds_read_b128 v[{AV+4*u}:{AV+4*u+3}], v{T} offset:{AB3+u*64}\n ds_read_b128 v[{BV+4*u}:{BV+4*u+3}], v{T} offset:{AB3+512+u*64}")
            a(f"""s_add_u32 s26, s6, {WS['Z2F']}
            s_addc_u32 s27, s7, 0""")
            srd(a, 36, 26, 27, 16*64*9216)
            a(f"""s_lshl_b32 s20, s14, 6
            s_lshl_b32 s21, s12, 2
            s_add_u32 s20, s20, s21
            s_add_u32 s20, s20, s18
            s_mul_i32 s20, s20, 9216
            v_lshlrev_b32 v{T+5}, 4, v{LN}
            s_waitcnt lgkmcnt(0)""")
            mark(a, 4, stamp)
            for i in range(9):
                o = s1 + 4*(i % 4)
                for u in range(2):
                    c = ACC + 8*i + 4*u
                    for r in (0, 2): pk(a, "v_pk_fma_f32", c+r, [('p', c+r), ('p', AV+4*u+r), ('p', BV+4*u+r)])
                for u in range(2):
                    c = ACC + 8*i + 4*u
                    a(f"v_cvt_pk_bf16_f32 v{o+2*u}, v{c}, v{c+1}\n v_cvt_pk_bf16_f32 v{o+2*u+1}, v{c+2}, v{c+3}")
                a(f"""s_nop 1
                v_permlane32_swap_b32 v{o}, v{o+2}
                v_permlane32_swap_b32 v{o+1}, v{o+3}
                s_nop 1
                v_permlane16_swap_b32 v{o}, v{o+2}
                v_permlane16_swap_b32 v{o+1}, v{o+3}""")
                if i % 4 == 0 and i > 0: a(f"s_add_u32 s20, s20, 4096")
                a(f"s_nop 0\n buffer_store_dwordx4 v[{o}:{o+3}], v{T+5}, s[36:39], s20 offen offset:{(i*1024) % 4096}")
            mark(a, 5, stamp)
            a(f"s_branch {name}_fin")
        else:
            tt = TT; AVv = TT+24
            a(f"""v_and_b32 v{T}, 15, v{LN}
            s_lshl_b32 s20, s18, 5
            v_add_u32 v{T}, s20, v{T}
            v_lshlrev_b32 v{T}, 2, v{T}
            ds_read_b32 v{AVv}, v{T} offset:{AB}
            ds_read_b32 v{AVv+1}, v{T} offset:{AB+512}
            ds_read_b32 v{AVv+2}, v{T} offset:{AB+64}
            ds_read_b32 v{AVv+3}, v{T} offset:{AB+512+64}
            v_lshrrev_b32 v{T+1}, 4, v{LN}
            v_lshlrev_b32 v{T+1}, 4, v{T+1}                ; g*16 bytes""")
            a(f"""s_add_u32 s26, s6, {WS['Z1F']}
            s_addc_u32 s27, s7, 0""")
            srd(a, 36, 26, 27, 128*72*1024)
            a(f"""s_lshl_b32 s20, s12, 3
            s_lshl_b32 s21, s18, 1
            s_add_u32 s20, s20, s21
            s_mul_i32 s20, s20, {72*1024}
            s_lshr_b32 s21, s14, 1
            s_mul_i32 s21, s21, 9
            s_and_b32 s25, s14, 1
            s_lshl_b32 s26, s25, 2
            s_add_u32 s26, s26, s21
            s_lshl_b32 s26, s26, 10
            s_add_u32 s48, s26, s20
            s_add_u32 s26, s21, 8
            s_lshl_b32 s26, s26, 10
            s_lshl_b32 s25, s25, 3
            s_add_u32 s26, s26, s25
            s_add_u32 s49, s26, s20            ; single u=0
            s_add_u32 s50, s48, {72*1024}
            s_add_u32 s51, s49, {72*1024}
            v_lshlrev_b32 v{T+5}, 4, v{LN}""")
            WQ = TT+32; PK = TT+48
            a(f"ds_read_b128 v[{WQ}:{WQ+3}], v{T+1} offset:{WT+1152}\n ds_read_b128 v[{WQ+4}:{WQ+7}], v{T+1} offset:{WT+1152+576}")
            for i in range(9):
                q = WQ + 8*(i & 1); qn = WQ + 8*((i+1) & 1)
                if i < 8:
                    a(f"ds_read_b128 v[{qn}:{qn+3}], v{T+1} offset:{WT+1152+(i+1)*64}\n ds_read_b128 v[{qn+4}:{qn+7}], v{T+1} offset:{WT+1152+576+(i+1)*64}")
                    a("s_waitcnt lgkmcnt(2)")
                else: a("s_waitcnt lgkmcnt(0)")
                prs = []
                for u in range(2):
                    for r in (0, 2): pk(a, "v_pk_fma_f32", tt+4*u+r, [('b', AVv+2*u+1), ('p', q+r), ('p', q+4+r)])
                for u in range(2):
                    c = ACC + 8*i + 4*u
                    for r in (0, 2): pk(a, "v_pk_fma_f32", c+r, [('b', AVv+2*u), ('p', c+r), ('p', tt+4*u+r)]); prs.append(c+r)
                gelu_pk(a, prs, tt, A1, 46, A1+2)
                for u in range(2):
                    c = ACC + 8*i + 4*u
                    o = PK + 18*u + 2*i
                    a(f"v_cvt_pk_bf16_f32 v{o}, v{c}, v{c+1}\n v_cvt_pk_bf16_f32 v{o+1}, v{c+2}, v{c+3}")
                    if i & 1:
                        so = 48 if u == 0 else 50
                        a(f"s_nop 0\n buffer_store_dwordx4 v[{o-2}:{o+1}], v{T+5}, s[36:39], s{so} offen offset:{(i>>1)*1024}")
                    if i == 8:
                        so = 49 if u == 0 else 51
                        a(f"s_nop 0\n buffer_store_dwordx2 v[{o}:{o+1}], v{T+5}, s[36:39], s{so} offen")
            mark(a, 3, stamp); mark(a, 4, stamp); mark(a, 5, stamp)
    a.label(f"{name}_fin")
    if stamp: emit_stamp(a, name)
    a.label(f"{name}_end")
    a("s_endpgm")
    return dict(name=name, body=a.text(), vgpr=256, sgpr=96, accum=256, grid=(256,1,1), block=(512,1,1), lds=163840)
```

```python
from asmgen import *
from gen_common import *

def gen_k4(name="gemm2_kernel", stamp=False, ROTW=4, spread=16, slack=2, nomfma=False, noload=False, noreads=False, nobar=False, wlin=False, map48=False, zonly=False, wonly=False, first=4, z1it=6, PD=0, pf2=False):
    a = A()
    BUF = 34816
    NST = 32
    a(f"""s_cmp_ge_u32 s2, 256
    s_cbranch_scc1 {name}_end
    s_load_dwordx2 s[4:5], s[0:1], {KA['wsp']}
    s_load_dwordx2 s[6:7], s[0:1], {KA['ws']}
    s_load_dwordx2 s[8:9], s[0:1], {KA['bsp']}""")
    if stamp: stamp_begin(a)
    if map48:
        a("""s_and_b32 s10, s2, 7
        s_lshr_b32 s11, s2, 3
        s_lshr_b32 s12, s10, 1
        s_lshl_b32 s12, s12, 2
        s_and_b32 s13, s11, 3
        s_add_u32 s12, s12, s13
        s_and_b32 s14, s10, 1
        s_lshl_b32 s14, s14, 3
        s_lshr_b32 s15, s11, 2
        s_add_u32 s14, s14, s15
        s_add_u32 s16, s13, s15
        v_lshrrev_b32 v1, 6, v0
        v_and_b32 v2, 63, v0
        s_nop 0
        v_readfirstlane_b32 s17, v1
        v_mov_b32 v255, v0
        s_waitcnt lgkmcnt(0)
        s_cmp_ge_u32 s17, 4""")
    else: a("""s_and_b32 s10, s2, 7            ; x
    s_lshr_b32 s11, s2, 3           ; q
    s_and_b32 s12, s10, 1
    s_lshl_b32 s12, s12, 3
    s_and_b32 s13, s11, 7           ; il
    s_add_u32 s12, s12, s13
    s_lshr_b32 s14, s10, 1
    s_lshl_b32 s14, s14, 2
    s_lshr_b32 s15, s11, 3          ; jl
    s_add_u32 s14, s14, s15
    s_add_u32 s16, s13, s15
    v_lshrrev_b32 v1, 6, v0
    v_and_b32 v2, 63, v0            ; lane
    s_nop 0
    v_readfirstlane_b32 s17, v1     ; wave
    v_mov_b32 v255, v0
    s_waitcnt lgkmcnt(0)
    s_cmp_ge_u32 s17, 4""")
    a(f"s_cbranch_scc1 {name}_loader")
    ACC = 0; ZB = [72, 108]; WB = [144, 152]; AD = 160; Z1 = 172; BS = 208; T = 212
    a(f"v_mov_b32 v{T}, v2")
    lane = T
    a(f"""s_lshl_b32 s18, s12, 3
    s_lshl_b32 s19, s17, 1
    s_add_u32 s18, s18, s19          ; tt0
    s_mul_i32 s18, s18, {72*1024}
    s_lshr_b32 s19, s14, 1
    s_mul_i32 s19, s19, 9            ; 9*(jb>>1)
    s_and_b32 s20, s14, 1
    s_lshl_b32 s21, s20, 2
    s_add_u32 s21, s21, s19          ; JJ0
    s_lshl_b32 s21, s21, 10
    s_add_u32 s21, s21, s18
    s_add_u32 s22, s19, 8
    s_lshl_b32 s22, s22, 10
    s_lshl_b32 s20, s20, 3
    s_add_u32 s22, s22, s20
    s_add_u32 s22, s22, s18
    s_add_u32 s23, s21, {72*1024}    ; u=1
    s_add_u32 s24, s22, {72*1024}""")
    a(f"s_add_u32 s26, s6, {WS['Z1F']}\n s_addc_u32 s27, s7, 0"); srd(a, 28, 26, 27, 128*72*1024)
    a(f"s_add_u32 s26, s6, {WS['PF']}\n s_addc_u32 s27, s7, 0"); srd(a, 32, 26, 27, 128*72*1024)
    srd(a, 36, 8, 9, 4096)
    a(f"v_lshlrev_b32 v{T+1}, 4, v{lane}")
    a(f"""s_lshl_b32 s25, s12, 7
    s_lshl_b32 s19, s17, 5
    s_add_u32 s25, s25, s19
    s_lshl_b32 s25, s25, 1
    v_and_b32 v{T+2}, 15, v{lane}
    v_lshlrev_b32 v{T+3}, 1, v{T+2}
""")
    def z1_loads():
        for u in range(2):
            so_p, so_s = (21, 22) if u == 0 else (23, 24)
            for r in range(4):
                a(f"buffer_load_dwordx4 v[{Z1+18*u+4*r}:{Z1+18*u+4*r+3}], v{T+1}, s[28:31], s{so_p} offen offset:{r*1024}")
            a(f"buffer_load_dwordx2 v[{Z1+18*u+16}:{Z1+18*u+17}], v{T+1}, s[28:31], s{so_s} offen")
        a(f"buffer_load_ushort v{BS}, v{T+3}, s[36:39], s25 offen")
        a(f"buffer_load_ushort v{BS+1}, v{T+3}, s[36:39], s25 offen offset:32")
    a(f"""v_lshrrev_b32 v{T+4}, 4, v{lane}
    v_and_b32 v{T+5}, 7, v{lane}
    v_xor_b32 v{T+4}, v{T+4}, v{T+5}
    v_lshlrev_b32 v{T+4}, 4, v{T+4}
    v_lshlrev_b32 v{T+5}, 7, v{T+2}
    v_add_u32 v{T+4}, v{T+4}, v{T+5}
    s_lshl_b32 s19, s17, 12
    v_add_u32 v{T+4}, s19, v{T+4}""")
    for b in range(4):
        a(f"v_add_u32 v{AD+3*b}, {b*BUF}, v{T+4}")
        a(f"v_xor_b32 v{AD+3*b+1}, 64, v{AD+3*b}")
        a(f"v_add_u32 v{AD+3*b+2}, {b*BUF+16384}, v{T+1}")
    for i in range(72): a(f"v_mov_b32 v{ACC+i}, 0")
    sch = LgkmSched(a)
    def reads(step):
        st, h = step >> 1, step & 1
        b = st & 3; p = step & 1
        out = []
        for u in range(2):
            r = WB[p] + 4*u
            out.append((f"ds_read_b128 v[{r}:{r+3}], v{AD+3*b+h} offset:{u*2048}", range(r, r+4)))
        for i in range(9):
            r = ZB[p] + 4*i
            out.append((f"ds_read_b128 v[{r}:{r+3}], v{AD+3*b+2} offset:{(h*9+i)*1024}", range(r, r+4)))
        return out
    def step_code(step, do_reads=True):
        p = step & 1
        rl = reads(step + 1) if (do_reads and not noreads) else []
        pos = [int(k*spread/len(rl)) for k in range(len(rl))] if rl else []
        k = 0; m = 0
        for i in range(9):
            for u in range(2):
                zr = ZB[p] + 4*i; wr = WB[p] + 4*u; c = ACC + 8*i + 4*u
                sch.need(list(range(zr, zr+4)) + list(range(wr, wr+4)), slack)
                if not nomfma: a(f"v_mfma_f32_16x16x32_bf16 v[{c}:{c+3}], v[{zr}:{zr+3}], v[{wr}:{wr+3}], v[{c}:{c+3}]")
                while k < len(rl) and pos[k] <= m:
                    a(rl[k][0]); sch.issue(rl[k][1]); k += 1
                m += 1
        while k < len(rl):
            a(rl[k][0]); sch.issue(rl[k][1]); k += 1
    mark(a, 0, stamp)
    a("s_barrier")
    mark(a, 1, stamp)
    for t, r in reads(0): a(t); sch.issue(r)
    a("s_mov_b32 s40, 0")
    a.label(f"{name}_cloop")
    q0 = [set(s) for s in sch.q]
    assert len(q0) == 11
    if noreads: sch.drain(); q0 = []
    a(f"s_cmp_lg_u32 s40, {z1it}\n s_cbranch_scc1 {name}_noz1")
    z1_loads()
    a.label(f"{name}_noz1")
    for st in range(4):
        step_code(2*st)
        sch.drain(force=True)
        a("s_barrier")
        last = (st == 3)
        step_code(2*st+1)
    qe = [set(s) for s in sch.q]
    assert qe == q0[len(q0)-len(qe):], "loop state mismatch"
    a("s_add_u32 s40, s40, 1\n s_cmp_lt_u32 s40, 8")
    a(f"s_cbranch_scc1 {name}_cloop")
    a("s_waitcnt lgkmcnt(0)")
    mark(a, 2, stamp)
    a("s_waitcnt vmcnt(0)")
    a(f"v_lshlrev_b32 v{BS}, 16, v{BS}\n v_lshlrev_b32 v{BS+1}, 16, v{BS+1}")
    mark(a, 3, stamp)
    a("s_nop 7")
    TM = 72
    for u in range(2):
        so_p, so_s = (21, 22) if u == 0 else (23, 24)
        for r in range(5):
            tiles = [2*r, 2*r+1] if r < 4 else [8]
            o = TM + 4*((u*5+r) % 8)
            for h, i in enumerate(tiles):
                c = ACC + 8*i + 4*u
                zsrc = Z1 + 18*u + 4*r + 2*h
                t0 = TM + 32
                a(f"""v_lshlrev_b32 v{t0}, 16, v{zsrc}
                v_and_b32 v{t0+1}, 0xffff0000, v{zsrc}
                v_lshlrev_b32 v{t0+2}, 16, v{zsrc+1}
                v_and_b32 v{t0+3}, 0xffff0000, v{zsrc+1}
                v_add_f32 v{c}, v{c}, v{BS+u}
                v_add_f32 v{c+1}, v{c+1}, v{BS+u}
                v_add_f32 v{c+2}, v{c+2}, v{BS+u}
                v_add_f32 v{c+3}, v{c+3}, v{BS+u}
                v_mul_f32 v{c}, v{c}, v{t0}
                v_mul_f32 v{c+1}, v{c+1}, v{t0+1}
                v_mul_f32 v{c+2}, v{c+2}, v{t0+2}
                v_mul_f32 v{c+3}, v{c+3}, v{t0+3}
                v_cvt_pk_bf16_f32 v{o+2*h}, v{c}, v{c+1}
                v_cvt_pk_bf16_f32 v{o+2*h+1}, v{c+2}, v{c+3}""")
            if r < 4: a(f"buffer_store_dwordx4 v[{o}:{o+3}], v{T+1}, s[32:35], s{so_p} offen offset:{r*1024}")
            else: a(f"buffer_store_dwordx2 v[{o}:{o+1}], v{T+1}, s[32:35], s{so_s} offen")
    mark(a, 4, stamp)
    mark(a, 5, stamp)
    a(f"s_branch {name}_fin")
    a.label(f"{name}_loader")
    a("s_sub_u32 s17, s17, 4      ; lw")
    a("s_lshl_b32 s18, s12, 19\n s_add_u32 s4, s4, s18\n s_addc_u32 s5, s5, 0"); srd(a, 28, 4, 5, 524288)
    a(f"s_mul_i32 s18, s14, {64*9216}\n s_add_u32 s18, s18, {WS['Z2F']}\n s_add_u32 s6, s6, s18\n s_addc_u32 s7, s7, 0"); srd(a, 32, 6, 7, 64*9216)
    a("""v_lshrrev_b32 v3, 3, v2
    v_and_b32 v4, 7, v2
    v_xor_b32 v4, v4, v3
    v_lshlrev_b32 v4, 4, v4
    v_lshlrev_b32 v3, 12, v3
    v_add_u32 v3, v3, v4
    s_lshl_b32 s18, s17, 17          ; lw*32*4096
    v_add_u32 v8, s18, v3""")
    for j in range(1, 4): a(f"v_add_u32 v{8+j}, {j*(32768-1024)}, v8")
    if wlin:
        a("v_lshlrev_b32 v8, 4, v2\n s_lshl_b32 s18, s17, 12\n v_add_u32 v8, s18, v8")
        for j in range(1, 4): a(f"v_mov_b32 v{8+j}, v8")
    a("""v_lshlrev_b32 v12, 4, v2
    s_lshl_b32 s18, s17, 12
    v_add_u32 v13, s18, v12
    s_lshl_b32 s19, s17, 10
    s_add_u32 s19, s19, 16384
    v_add_u32 v14, s19, v12
    s_lshl_b32 s20, s17, 12
    s_lshl_b32 s21, s17, 10          ; lw*1024""")
    if PD:
        a("""s_lshl_b32 s18, s15, 17
        s_lshl_b32 s19, s17, 15
        s_add_u32 s18, s18, s19
        s_add_u32 s44, s4, s18
        s_addc_u32 s45, s5, 0
        s_mul_i32 s18, s13, 2304
        s_lshl_b32 s19, s17, 9
        s_add_u32 s19, s19, s18
        s_add_u32 s46, s6, s19
        s_addc_u32 s47, s7, 0
        s_lshl_b32 s19, s17, 7
        s_add_u32 s19, s19, s18
        s_add_u32 s19, s19, 2048
        s_add_u32 s48, s6, s19
        s_addc_u32 s49, s7, 0""")
    a("s_cmp_lt_u32 s17, 2")
    a(f"s_cbranch_scc0 {name}_loader4")
    for cls in (5, 4):
        if cls == 4: a.label(f"{name}_loader4")
        def issue(st):
            if noload: return
            b = st & 3
            a(f"""s_add_u32 s22, s16, {st & (ROTW-1)}
            s_and_b32 s22, s22, {ROTW-1}
            s_add_u32 s22, s22, {st & ~(ROTW-1)}
            s_lshl_b32 s23, s22, {14 if wlin else 7}
            s_mul_i32 s24, s22, 18432
            s_add_u32 m0, s20, {b*BUF}
            s_nop 0""")
            for j in range(4):
                if not zonly: a(f"buffer_load_dwordx4 v{8+j}, s[28:31], s23 offen offset:{j*1024} lds")
            a(f"s_add_u32 m0, s20, {b*BUF+16384}\n s_nop 0")
            for j in range(4):
                if not wonly: a(f"buffer_load_dwordx4 v13, s[32:35], s24 offen offset:{j*1024} lds")
            if cls == 5 and not wonly:
                a(f"s_add_u32 m0, s21, {b*BUF+32768}\n s_nop 0")
                a(f"buffer_load_dwordx4 v14, s[32:35], s24 offen lds")
        def prefetch(st):
            if not PD or st >= NST: return
            for r in range(8):
                a(f"s_load_dword s50, s[44:45], {r*4096 + st*128}")
                if pf2: a(f"s_load_dword s50, s[44:45], {r*4096 + st*128 + 64}")
            for r in range(4):
                a(f"s_load_dword s51, s[46:47], {st*18432 + r*128}")
                if pf2: a(f"s_load_dword s51, s[46:47], {st*18432 + r*128 + 64}")
            if cls == 5:
                a(f"s_load_dword s51, s[48:49], {st*18432}")
                if pf2: a(f"s_load_dword s51, s[48:49], {st*18432 + 64}")
        per = (0 if zonly else 4) + (0 if wonly else (5 if cls == 5 else 4))
        for st in range(first): issue(st)
        a(f"s_waitcnt vmcnt({(first-1)*per})\n s_barrier")
        for st in range(first, 4): issue(st)
        for st in range(4, 4+PD): prefetch(st)
        issued = 4
        for i in range(NST):
            need = min(i + 1, NST - 1)
            a(f"s_waitcnt vmcnt({(issued - 1 - need)*per})\n s_barrier")
            if issued < NST: issue(issued); prefetch(issued + PD); issued += 1
        a(f"s_branch {name}_fin")
    a.label(f"{name}_fin")
    if stamp: emit_stamp(a, name)
    a.label(f"{name}_end")
    a("s_endpgm")
    return dict(name=name, body=a.text(), vgpr=256, sgpr=96, accum=256, grid=(256,1,1), block=(512,1,1), lds=4*BUF)
```

```python
from asmgen import *
from gen_common import *
from gen_k3 import fbits

def gen_k5(name="gemm3_kernel", stamp=False, gscale=1.0):
    a = A()
    PSTR = 272; WSZ = 72*PSTR
    a(f"""s_cmp_ge_u32 s2, 256
    s_cbranch_scc1 {name}_end
    s_load_dwordx2 s[6:7], s[0:1], {KA['ws']}
    s_load_dwordx2 s[8:9], s[0:1], {KA['out']}""")
    if stamp: stamp_begin(a)
    a("""s_and_b32 s10, s2, 7            ; x
    s_lshr_b32 s11, s2, 3           ; q
    s_lshr_b32 s12, s10, 1
    s_lshl_b32 s12, s12, 3
    s_and_b32 s13, s11, 7
    s_add_u32 s12, s12, s13         ; tb
    s_and_b32 s14, s10, 1
    s_lshl_b32 s14, s14, 2
    s_lshr_b32 s15, s11, 3
    s_add_u32 s14, s14, s15         ; db
    v_lshrrev_b32 v1, 6, v0
    v_and_b32 v2, 63, v0            ; lane
    v_mov_b32 v255, v0
    v_readfirstlane_b32 s17, v1     ; wave""")
    ACC = 0; RB = [80, 116, 152]; VP = 188; VW = 192; VW5 = 193; LN = 194; X1 = 196; GB = 206; T = 212
    a(f"""v_mov_b32 v{LN}, v2
    v_lshlrev_b32 v{VW}, 4, v2""")
    for m in range(4): a(f"v_add_u32 v{VP+m}, {m*73728}, v{VW}")
    a(f"""v_and_b32 v3, 15, v2
    v_add_u32 v4, 4096, v{VW}
    v_mov_b32 v5, 0x40000000
    v_cmp_gt_u32 vcc, 8, v3
    s_nop 1
    v_cndmask_b32 v{VW5}, v5, v4, vcc
    s_waitcnt lgkmcnt(0)""")
    a(f"s_mul_i32 s20, s12, {4*73728}\n s_add_u32 s20, s20, {WS['PF']}\n s_add_u32 s26, s6, s20\n s_addc_u32 s27, s7, 0"); srd(a, 28, 26, 27, 4*73728)
    a(f"s_mul_i32 s20, s14, {72*5120}\n s_add_u32 s20, s20, {WS['WOF']}\n s_add_u32 s26, s6, s20\n s_addc_u32 s27, s7, 0"); srd(a, 32, 26, 27, 72*5120)
    a(f"s_mul_i32 s40, s17, {18*1024}\n s_mul_i32 s41, s17, {18*5120}")
    def loads(slot):
        r = RB[slot]
        for m in range(4): a(f"buffer_load_dwordx4 v[{r+4*m}:{r+4*m+3}], v{VP+m}, s[28:31], s40 offen")
        for n in range(4): a(f"buffer_load_dwordx4 v[{r+16+4*n}:{r+16+4*n+3}], v{VW}, s[32:35], s41 offen offset:{n*1024}")
        a(f"buffer_load_dwordx4 v[{r+32}:{r+35}], v{VW5}, s[32:35], s41 offen")
        a("s_add_u32 s40, s40, 1024\n s_add_u32 s41, s41, 5120")
    loads(0); loads(1)
    a(f"s_add_u32 s26, s6, {WS['X1T']}\n s_addc_u32 s27, s7, 0"); srd(a, 36, 26, 27, 576*4096)
    a(f"s_add_u32 s26, s6, {WS['MOD']}\n s_addc_u32 s27, s7, 0"); srd(a, 44, 26, 27, 6*576*4)
    a(f"s_mov_b32 s51, {5*576*4}")
    DV = T; TQ = T+5
    for k in range(5):
        if k < 4:
            a(f"v_mov_b32 v{DV+k}, v{LN}\n s_add_u32 s20, s17, {4*k}\n v_mov_b32 v{TQ+k}, s20")
        else:
            a(f"""v_and_b32 v{DV+k}, 7, v{LN}
            v_add_u32 v{DV+k}, 64, v{DV+k}
            v_lshrrev_b32 v{TQ+k}, 3, v{LN}
            s_lshl_b32 s20, s17, 3
            v_add_u32 v{TQ+k}, s20, v{TQ+k}
            v_mov_b32 v3, 0x4000
            v_cmp_gt_u32 vcc, 16, v{TQ+k}
            s_nop 1
            v_cndmask_b32 v{DV+k}, v3, v{DV+k}, vcc""")
        a(f"""s_mul_i32 s20, s14, 72
        v_add_u32 v3, s20, v{DV+k}
        v_lshlrev_b32 v4, 12, v3
        s_lshl_b32 s21, s12, 7
        v_lshlrev_b32 v5, 3, v{TQ+k}
        v_add3_u32 v4, v4, v5, s21
        v_lshlrev_b32 v3, 2, v3
        buffer_load_dwordx2 v[{X1+2*k}:{X1+2*k+1}], v4, s[36:39], 0 offen
        buffer_load_dword v{GB+k}, v3, s[44:47], s51 offen""")
    extra = 10
    for i in range(80): a(f"v_mov_b32 v{ACC+i}, 0")
    a("s_mov_b32 s42, 0")
    mark(a, 0, stamp)
    a.label(f"{name}_loop")
    for sl in range(3):
        a(f"s_cmp_ge_u32 s42, {16 - sl}\n s_cbranch_scc1 {name}_nl{sl}")
        loads((sl+2) % 3)
        a(f"s_waitcnt vmcnt(18)\n s_branch {name}_c{sl}")
        a.label(f"{name}_nl{sl}")
        if sl == 1: a("s_waitcnt vmcnt(9)")
        elif sl == 2: a("s_waitcnt vmcnt(0)")
        else: a("s_waitcnt vmcnt(0)")
        a.label(f"{name}_c{sl}")
        r = RB[sl]
        for m in range(4):
            for n in range(5):
                c = ACC + 20*m + 4*n
                a(f"v_mfma_f32_16x16x32_bf16 v[{c}:{c+3}], v[{r+4*m}:{r+4*m+3}], v[{r+16+4*n}:{r+16+4*n+3}], v[{c}:{c+3}]")
    a(f"s_add_u32 s42, s42, 3\n s_cmp_lt_u32 s42, 18\n s_cbranch_scc1 {name}_loop")
    mark(a, 1, stamp)
    a(f"""v_and_b32 v{RB[0]}, 15, v{LN}
    v_lshrrev_b32 v{RB[0]+1}, 4, v{LN}
    v_mul_u32_u24 v{RB[0]+2}, {PSTR}, v{RB[0]}
    v_lshlrev_b32 v{RB[0]+1}, 4, v{RB[0]+1}
    v_add_u32 v{RB[0]+2}, v{RB[0]+2}, v{RB[0]+1}
    s_mul_i32 s20, s17, {WSZ}
    v_add_u32 v{RB[0]+2}, s20, v{RB[0]+2}
    s_nop 4""")
    AD = RB[0]+2
    for m in range(4):
        for n in range(4):
            c = ACC + 20*m + 4*n
            a(f"ds_write_b128 v{AD}, v[{c}:{c+3}] offset:{n*16*PSTR + m*64}")
    a(f"v_cmp_gt_u32 vcc, 8, v{RB[0]}\n s_and_saveexec_b64 s[48:49], vcc")
    for m in range(4):
        c = ACC + 20*m + 16
        a(f"ds_write_b128 v{AD}, v[{c}:{c+3}] offset:{64*PSTR + m*64}")
    a("s_mov_b64 exec, s[48:49]\n s_waitcnt lgkmcnt(0)\n s_barrier")
    mark(a, 2, stamp)
    a(f"s_add_u32 s26, s8, 0\n s_addc_u32 s27, s9, 0"); srd(a, 28, 26, 27, 2048*1152)
    a(f"s_mov_b32 s50, {fbits(gscale):#x}")
    for k in range(5):
        if k == 4: a(f"s_cmp_ge_u32 s17, 2\n s_cbranch_scc1 {name}_done")
        b = 8 + 16*(k % 2)
        a(f"""v_mul_u32_u24 v0, {PSTR}, v{DV+k}
        v_lshlrev_b32 v1, 4, v{TQ+k}
        v_add_u32 v0, v0, v1""")
        for w in range(4):
            a(f"ds_read_b128 v[{b+4*w}:{b+4*w+3}], v0 offset:{w*WSZ}")
        a(f"""v_lshlrev_b32 v2, 2, v{TQ+k}
        s_lshl_b32 s20, s12, 6
        v_add_u32 v2, s20, v2
        v_mul_u32_u24 v2, 1152, v2
        s_mul_i32 s20, s14, 144
        v_lshlrev_b32 v3, 1, v{DV+k}
        v_add3_u32 v2, v2, v3, s20
        v_mul_f32 v{GB+k}, s50, v{GB+k}
        v_lshlrev_b32 v4, 16, v{X1+2*k}
        v_and_b32 v5, 0xffff0000, v{X1+2*k}
        v_lshlrev_b32 v6, 16, v{X1+2*k+1}
        v_and_b32 v7, 0xffff0000, v{X1+2*k+1}
        s_waitcnt lgkmcnt(0)""")
        for r in range(4):
            a(f"v_add_f32 v{b+r}, v{b+r}, v{b+4+r}\n v_add_f32 v{b+8+r}, v{b+8+r}, v{b+12+r}")
        for r in range(4): a(f"v_add_f32 v{b+r}, v{b+r}, v{b+8+r}")
        for r in range(4): a(f"v_fma_f32 v{b+r}, v{b+r}, v{GB+k}, v{4+r}")
        a(f"v_cvt_pk_bf16_f32 v{b+4}, v{b}, v{b+1}\n v_cvt_pk_bf16_f32 v{b+5}, v{b+2}, v{b+3}")
        a(f"""buffer_store_short v{b+4}, v2, s[28:31], 0 offen
        v_add_u32 v3, 1152, v2
        buffer_store_short_d16_hi v{b+4}, v3, s[28:31], 0 offen
        buffer_store_short v{b+5}, v2, s[28:31], 0 offen offset:2304
        buffer_store_short_d16_hi v{b+5}, v3, s[28:31], 0 offen offset:2304""")
    a.label(f"{name}_done")
    mark(a, 3, stamp); mark(a, 4, stamp); mark(a, 5, stamp)
    if stamp: emit_stamp(a, name)
    a.label(f"{name}_end")
    a("s_endpgm")
    return dict(name=name, body=a.text(), vgpr=256, sgpr=96, accum=256, grid=(256,1,1), block=(256,1,1), lds=4*WSZ)
```

```python
import sys
from asmgen import *
from gen_k1 import gen_k1
from gen_k2 import gen_k2
from gen_k3 import gen_k3
from gen_k4 import gen_k4
from gen_k5 import gen_k5
OUT = 'adaLN_cond__ssm_conv_s4__mixer_gmlp__prompt.s'
def build(out=OUT, extra_empty=0, opts=None):
    opts = opts or {}
    ks = [gen_k1(**opts.get('k1', {})), gen_k2(**opts.get('k2', {})), gen_k3(**opts.get('k3', {})), gen_k4(**opts.get('k4', dict(first=2))), gen_k5(**opts.get('k5', {}))]
    ref = open('adaLN_cond__ssm_conv_s4__mixer_gmlp__prompt.s.ref').read().split('\n')
    head = [l for l in ref if l.startswith(';') and '@launch' not in l and 'Override launch' not in l and 'grid=ceil' not in l]
    launches = [(k['name'], k['grid'], k['block'], k['lds']) for k in ks]
    kern = [(k['name'], k['body'], k['vgpr'], k['sgpr'], k['accum']) for k in ks]
    if extra_empty:
        kern.append(("empty_kernel", "    s_endpgm\n", 8, 16, 8))
        launches += [("empty_kernel", (1,1,1), (64,1,1), 0)]*extra_empty
    txt = '\n'.join(head) + '\n' + wrap(launches, kern)
    open(out, 'w').write(txt)
    return txt
if __name__ == '__main__':
    t = build()
    print(len(t), 'bytes')
```
